```python
import torch

def _softmax(x, axis=-1):
    return torch.softmax(x, dim=axis)
def _gelu(x):
    return torch.nn.functional.gelu(x, approximate="tanh")
def _silu(x):
    return torch.nn.functional.silu(x)
def _sigmoid(x):
    return torch.sigmoid(x)
def _layernorm(x, axis=-1, eps=1e-5):
    m = x.mean(dim=axis, keepdim=True)
    v = x.var(dim=axis, keepdim=True, unbiased=False)
    return (x - m) / torch.sqrt(v + eps)
def _scatter_add(tgt, idx, src, axis=0):
    return tgt.clone().index_add_(axis, idx, src)
def _segment_sum(src, seg, n):
    out = torch.zeros((n,) + src.shape[1:], dtype=src.dtype)
    return out.index_add_(0, seg, src)
def _pad(x, pw):
    flat = tuple(v for pair in reversed(pw) for v in pair)
    return torch.nn.functional.pad(x, flat)

kernel_name = 'standalone__ssm_conv_s5__prompt'

def setup_inputs():

    _w = (lambda a: (lambda t: t.to(torch.bfloat16) if t.is_floating_point() else t)(torch.as_tensor(a)))
    B, S, D = 1, 2048, 1024
    P = D
    Lambda_re = -0.5 * (lambda _x: torch.exp(torch.as_tensor(_x)))((lambda *s: torch.randn(*s, dtype=torch.bfloat16) * 0.2)(P))
    Lambda_im = (lambda *s: torch.randn(*s, dtype=torch.bfloat16) * 0.4)(P) * 1.0
    B_re = (lambda *s: torch.randn(*s, dtype=torch.bfloat16) * 0.2)(P, D) * (D ** -0.5)
    B_im = (lambda *s: torch.randn(*s, dtype=torch.bfloat16) * 0.2)(P, D) * (D ** -0.5)
    C_re = (lambda *s: torch.randn(*s, dtype=torch.bfloat16) * 0.2)(D, P) * (P ** -0.5)
    C_im = (lambda *s: torch.randn(*s, dtype=torch.bfloat16) * 0.2)(D, P) * (P ** -0.5)
    log_dt = (lambda *s: torch.randn(*s, dtype=torch.bfloat16) * 0.2)(P) * 0.3 - 2.0
    Dskip = (lambda *s: torch.randn(*s, dtype=torch.bfloat16) * 0.05)(D)
    return {
        "x": _w((lambda *s: torch.randn(*s, dtype=torch.bfloat16) * 0.05)(B, S, D)),
        "Lambda_re": _w(Lambda_re),
        "Lambda_im": _w(Lambda_im),
        "B_re": _w(B_re),
        "B_im": _w(B_im),
        "C_re": _w(C_re),
        "C_im": _w(C_im),
        "log_dt": _w(log_dt),
        "Dskip": _w(Dskip),
    }

def reference(x, Lambda_re, Lambda_im, B_re, B_im, C_re, C_im, log_dt, Dskip):
    Bsz, L, H = x.shape
    Lam = Lambda_re + 1j * Lambda_im
    Bmat = B_re + 1j * B_im
    Cmat = C_re + 1j * C_im
    dt = torch.exp(log_dt)
    Lam_bar = torch.exp(dt * Lam)
    B_bar = ((Lam_bar - 1.0) / Lam)[:, None] * Bmat
    Bu = torch.einsum("bld,pd->blp", x + 0j, B_bar)
    h = torch.zeros_like(Bu[:, 0, :])
    hs = []
    for t in range(L):
        h = Lam_bar[None, :] * h + Bu[:, t, :]
        hs.append(h)
    hseq = torch.stack(hs, 1)
    y = 2.0 * torch.einsum("blp,dp->bld", hseq, Cmat).real + x * Dskip[None, None, :]
    return y
```

```python
import sys

L, D, P = 2048, 1024, 1024
WS_H = 0
WS_AGG = 8 << 20


class Asm:
    def __init__(self):
        self.lines = []

    def __call__(self, s=""):
        for ln in s.strip("\n").split("\n"):
            self.lines.append("    " + ln.strip() if ln.strip() and not ln.strip().endswith(":") else ln.strip())

    def label(self, s):
        self.lines.append(s + ":")

    def text(self):
        return "\n".join(self.lines) + "\n"


def srd(a, d, nbytes):
    a(f"s_and_b32 s{d+1}, s{d+1}, 0xffff")
    a(f"s_mov_b32 s{d+2}, {nbytes}")
    a(f"s_mov_b32 s{d+3}, 0x00020000")


def mfma(a, acc, A, B):
    a(f"v_mfma_f32_32x32x16_bf16 v[{acc}:{acc+15}], v[{A}:{A+3}], v[{B}:{B+3}], v[{acc}:{acc+15}]")


LOG2E_HI = 0x3fb8aa3b
LOG2E_LO = 0x32a57060
LN2 = 0x3f317218


def exp_f32(a, dst, src, t0, t1, sA, sB):
    a(f"s_mov_b32 s{sA}, {LOG2E_HI:#x}")
    a(f"s_mov_b32 s{sB}, {LOG2E_LO:#x}")
    a(f"v_mul_f32 v{t0}, s{sA}, v{src}")
    a(f"v_fma_f32 v{t1}, v{src}, s{sA}, -v{t0}")
    a(f"v_fma_f32 v{t1}, v{src}, s{sB}, v{t1}")
    a(f"v_exp_f32 v{t0}, v{t0}")
    a(f"s_mov_b32 s{sA}, {LN2:#x}")
    a(f"v_mul_f32 v{t1}, s{sA}, v{t1}")
    a(f"s_nop 0")
    a(f"v_fma_f32 v{dst}, v{t0}, v{t1}, v{t0}")


def csq(a, dr, di, sr, si, t):
    a(f"v_mul_f32 v{t}, v{si}, v{si}")
    a(f"v_fma_f32 v{dr}, v{sr}, v{sr}, -v{t}")
    a(f"v_add_f32 v{t}, v{sr}, v{sr}")
    a(f"v_mul_f32 v{di}, v{t}, v{si}")


def cfma(a, dr, di, ar, ai, br, bi, cr, ci):
    a(f"v_fma_f32 v{dr}, v{ar}, v{br}, v{cr}")
    a(f"v_fma_f32 v{di}, v{ar}, v{bi}, v{ci}")
    a(f"v_fma_f32 v{dr}, -v{ai}, v{bi}, v{dr}")
    a(f"v_fma_f32 v{di}, v{ai}, v{br}, v{di}")


K1_STAGE = 16384
K1_NB = 4
K1_AGG = K1_STAGE * K1_NB
K1_LDS = K1_AGG + 2048
K1_PB = 272


def gen_k1(a):
    a.label("ssm_k1_kernel")
    a("""
    s_cmp_ge_u32 s2, 256
    s_cbranch_scc1 K1_END
    s_load_dwordx2 s[4:5], s[0:1], 0
    s_load_dwordx2 s[8:9], s[0:1], 24
    s_load_dwordx2 s[12:13], s[0:1], 32
    s_load_dwordx2 s[16:17], s[0:1], 88
    s_load_dwordx2 s[18:19], s[0:1], 80
    s_load_dwordx2 s[20:21], s[0:1], 8
    s_load_dwordx2 s[22:23], s[0:1], 16
    s_load_dwordx2 s[24:25], s[0:1], 56
    s_and_b32 s26, s2, 7
    s_lshr_b32 s27, s2, 3
    s_and_b32 s30, s26, 3
    s_lshl_b32 s30, s30, 2
    s_and_b32 s31, s27, 3
    s_add_u32 s30, s30, s31            ; s30 = c (chunk)
    s_lshr_b32 s31, s26, 2
    s_lshl_b32 s31, s31, 3
    s_lshr_b32 s27, s27, 2
    s_add_u32 s31, s31, s27
    v_lshrrev_b32 v1, 6, v0
    v_and_b32 v0, 63, v0               ; v0 = lane
    v_readfirstlane_b32 s28, v1        ; s28 = wave
    s_nop 3
    s_lshr_b32 s26, s28, 1             ; s26 = wr
    s_and_b32 s27, s28, 1              ; s27 = wc
    """)
    a("""
    v_and_b32 v7, 31, v0
    v_lshrrev_b32 v8, 5, v0
    v_lshrrev_b32 v1, 2, v0
    v_lshlrev_b32 v1, 11, v1
    v_lshrrev_b32 v2, 4, v0
    v_xor_b32 v2, v2, v0
    v_and_b32 v2, 3, v2
    v_lshlrev_b32 v2, 4, v2
    v_add_u32 v1, v1, v2               ; v1 = vOffA
    v_add_u32 v2, 0x8000, v1
    v_lshrrev_b32 v3, 2, v7
    v_and_b32 v3, 1, v3
    v_lshlrev_b32 v3, 5, v3
    v_and_b32 v4, 3, v7
    v_add_u32 v3, v3, v4
    v_lshrrev_b32 v4, 3, v7            ; m>>3
    v_lshlrev_b32 v5, 2, v4
    v_add_u32 v3, v3, v5
    s_lshl_b32 s29, s26, 6
    v_add_u32 v3, s29, v3              ; T0
    v_lshlrev_b32 v3, 6, v3            ; T0*64
    v_xor_b32 v4, v8, v4               ; hb ^ (m>>3)
    v_lshlrev_b32 v4, 4, v4
    v_add_u32 v3, v3, v4               ; v3 = vA_k0
    v_xor_b32 v4, 32, v3               ; v4 = vA_k1
    v_lshrrev_b32 v5, 4, v7
    s_lshl_b32 s29, s27, 1
    v_add_u32 v5, s29, v5
    v_lshlrev_b32 v5, 11, v5
    v_and_b32 v6, 15, v7
    v_lshlrev_b32 v6, 6, v6
    v_add_u32 v5, v5, v6
    v_lshrrev_b32 v6, 2, v7
    v_and_b32 v6, 3, v6
    v_xor_b32 v6, v8, v6
    v_lshlrev_b32 v6, 4, v6
    v_add_u32 v5, v5, v6
    v_add_u32 v5, 0x2000, v5           ; v5 = vB_k0
    v_xor_b32 v6, 32, v5               ; v6 = vB_k1
    s_lshl_b32 s29, s31, 6
    s_lshl_b32 s32, s27, 5
    s_add_u32 s29, s29, s32
    v_add_u32 v9, s29, v7
    v_lshlrev_b32 v9, 1, v9
    s_waitcnt lgkmcnt(0)
    """)
    srd(a, 4, L * D * 2)
    srd(a, 8, P * D * 2)
    srd(a, 12, P * D * 2)
    a("""
    global_load_ushort v10, v9, s[20:21]
    global_load_ushort v11, v9, s[22:23]
    global_load_ushort v12, v9, s[24:25]
    s_lshl_b32 s32, s30, 18            ; c*128*2048
    s_lshl_b32 s33, s28, 16            ; w*32*2048
    s_add_u32 s32, s32, s33            ; s32 = sA
    s_lshl_b32 s33, s31, 17            ; pt*64*2048
    s_lshl_b32 s34, s28, 15            ; w*16*2048
    s_add_u32 s33, s33, s34            ; s33 = sB
    s_lshl_b32 s34, s28, 11
    """)

    def dma_stage(b):
        base = b * K1_STAGE
        a(f"s_add_u32 m0, s34, {base}")
        a("s_nop 0")
        a("buffer_load_dwordx4 v1, s[4:7], s32 offen lds")
        a(f"s_add_u32 m0, s34, {base + 1024}")
        a("s_nop 0")
        a("buffer_load_dwordx4 v2, s[4:7], s32 offen lds")
        a(f"s_add_u32 m0, s34, {base + 8192}")
        a("s_add_u32 s32, s32, 64")
        a("buffer_load_dwordx4 v1, s[8:11], s33 offen lds")
        a(f"s_add_u32 m0, s34, {base + 8192 + 1024}")
        a("s_nop 0")
        a("buffer_load_dwordx4 v1, s[12:15], s33 offen lds")
        a("s_add_u32 s33, s33, 64")

    for b in range(3):
        dma_stage(b)

    for r in range(64, 128):
        a(f"v_mov_b32 v{r}, 0")

    a("""
    s_waitcnt vmcnt(12)
    v_lshlrev_b32 v10, 16, v10
    v_lshlrev_b32 v11, 16, v11
    v_lshlrev_b32 v12, 16, v12
    """)
    exp_f32(a, 13, 12, 14, 15, 36, 37)
    a("""
    v_cvt_pk_bf16_f32 v13, v13, v13
    v_lshlrev_b32 v13, 16, v13
    v_mul_f32 v14, v13, v10            ; zr
    v_mul_f32 v15, v13, v11            ; zi
    """)
    exp_f32(a, 16, 14, 17, 18, 36, 37)
    a("""
    v_mul_f32 v17, 0.15915494, v15
    v_fract_f32 v17, v17
    v_sin_f32 v18, v17
    v_cos_f32 v19, v17
    s_nop 0
    v_mul_f32 v20, v16, v19            ; v20 = Lr
    v_mul_f32 v21, v16, v18            ; v21 = Li
    v_sub_f32 v22, 0, v21              ; v22 = -Li
    v_add_f32 v13, -1.0, v20           ; a = Lr-1
    v_mul_f32 v14, v13, v10
    v_fma_f32 v14, v21, v11, v14
    v_mul_f32 v15, v21, v10
    v_fma_f32 v15, -v13, v11, v15
    v_mul_f32 v16, v10, v10
    v_fma_f32 v16, v11, v11, v16       ; den
    v_rcp_f32 v17, v16
    s_nop 0
    v_fma_f32 v18, -v16, v17, 1.0
    v_fma_f32 v17, v17, v18, v17
    v_mul_f32 v23, v14, v17            ; v23 = cr
    v_mul_f32 v24, v15, v17            ; v24 = ci
    v_mul_f32 v25, v23, v20
    v_fma_f32 v25, -v24, v21, v25
    v_mul_f32 v26, v23, v21
    v_fma_f32 v26, v24, v20, v26
    v_add_f32 v23, v23, v23            ; v23 = 2cr
    v_add_f32 v24, v24, v24            ; v24 = 2ci
    """)
    csq(a, 13, 14, 20, 21, 17)
    csq(a, 15, 16, 13, 14, 17)
    csq(a, 13, 14, 15, 16, 17)
    csq(a, 15, 16, 13, 14, 17)
    csq(a, 27, 28, 15, 16, 17)
    csq(a, 13, 14, 27, 28, 17)
    csq(a, 29, 30, 13, 14, 17)

    PA0, PA1, PB0, PB1 = 32, 36, 40, 44
    QA0, QA1, QB0, QB1 = 48, 52, 56, 60
    ACC = [[64, 80], [96, 112]]

    def reads(b, ks, s):
        A0, A1, B0, B1 = s
        va = 3 if ks == 0 else 4
        vb = 5 if ks == 0 else 6
        base = b * K1_STAGE
        a(f"ds_read_b128 v[{A0}:{A0+3}], v{va} offset:{base}")
        a(f"ds_read_b128 v[{B0}:{B0+3}], v{vb} offset:{base}")
        a(f"ds_read_b128 v[{B1}:{B1+3}], v{vb} offset:{base + 1024}")
        a(f"ds_read_b128 v[{A1}:{A1+3}], v{va} offset:{base + 1024}")

    def mfmas(s):
        A0, A1, B0, B1 = s
        mfma(a, ACC[0][0], A0, B0)
        mfma(a, ACC[0][1], A0, B1)
        mfma(a, ACC[1][0], A1, B0)
        mfma(a, ACC[1][1], A1, B1)

    Pset = (PA0, PA1, PB0, PB1)
    Qset = (QA0, QA1, QB0, QB1)

    a("s_waitcnt vmcnt(8)")
    a("s_barrier")
    reads(0, 0, Pset)

    def stage(b, wait, dma, prefetch):
        if wait is not None:
            a(f"s_waitcnt vmcnt({wait})")
            a("s_barrier")
        if dma:
            dma_stage((b + 3) % 4)
        reads(b, 1, Qset)
        a("s_waitcnt lgkmcnt(4)")
        mfmas(Pset)
        if prefetch:
            reads((b + 1) % 4, 0, Pset)
            a("s_waitcnt lgkmcnt(4)")
        else:
            a("s_waitcnt lgkmcnt(0)")
        mfmas(Qset)

    a("s_mov_b32 s35, 7")
    a.label("K1_LOOP")
    for b in range(4):
        stage(b, 4, True, True)
    a("s_sub_u32 s35, s35, 1")
    a("s_cmp_lg_u32 s35, 0")
    a("s_cbranch_scc1 K1_LOOP")
    stage(0, 4, True, True)
    stage(1, 4, False, True)
    stage(2, 0, False, True)
    stage(3, None, False, False)
    a("s_nop 15")
    a("s_nop 3")

    def gr(t):
        return ACC[t // 16][0] + (t % 16)

    def gi(t):
        return ACC[t // 16][1] + (t % 16)

    for t in range(1, 32):
        a(f"v_fmac_f32 v{gr(t)}, v20, v{gr(t-1)}")
        a(f"v_fmac_f32 v{gi(t)}, v20, v{gi(t-1)}")
        a(f"v_fmac_f32 v{gr(t)}, v22, v{gi(t-1)}")
        a(f"v_fmac_f32 v{gi(t)}, v21, v{gr(t-1)}")

    a(f"""
    s_lshl_b32 s29, s27, 5
    v_add_u32 v9, s29, v7
    v_lshlrev_b32 v10, 3, v9
    v_add_u32 v10, {K1_AGG}, v10
    s_lshl_b32 s29, s26, 1
    v_add_u32 v11, s29, v8
    v_lshlrev_b32 v11, 9, v11
    v_add_u32 v11, v11, v10
    ds_write2_b32 v11, v{gr(31)}, v{gi(31)} offset0:0 offset1:1
    s_waitcnt lgkmcnt(0)
    s_barrier
    ds_read_b64 v[12:13], v10
    ds_read_b64 v[14:15], v10 offset:512
    ds_read_b64 v[16:17], v10 offset:1024
    ds_read_b64 v[18:19], v10 offset:1536
    s_lshl_b32 s29, s31, 13
    s_add_u32 s29, s29, {WS_AGG}
    v_lshlrev_b32 v9, 3, v9
    v_add_u32 v9, s29, v9
    s_lshl_b32 s29, s30, 9
    v_add_u32 v11, s29, v9
    s_waitcnt lgkmcnt(0)
    """)
    cfma(a, 32, 33, 12, 13, 27, 28, 14, 15)
    cfma(a, 34, 35, 32, 33, 27, 28, 16, 17)
    cfma(a, 32, 33, 34, 35, 27, 28, 18, 19)
    a("""
    s_cmp_lg_u32 s26, 0
    s_cbranch_scc1 K1_NOPUB
    v_cmp_gt_u32 vcc, 32, v0
    s_and_saveexec_b64 s[36:37], vcc
    global_store_dwordx2 v11, v[32:33], s[16:17] sc1
    s_mov_b64 exec, s[36:37]
    s_waitcnt vmcnt(0)
    """)
    a.label("K1_NOPUB")
    a("""
    s_barrier
    s_lshl_b32 s29, s31, 2
    v_mov_b32 v34, s29
    s_cmp_lg_u32 s28, 0
    s_cbranch_scc1 K1_NOSIG
    v_cmp_eq_u32 vcc, 0, v0
    s_and_saveexec_b64 s[36:37], vcc
    v_mov_b32 v35, 1
    global_atomic_add v34, v35, s[18:19]
    s_mov_b64 exec, s[36:37]
    """)
    a.label("K1_NOSIG")
    a("""
    v_mov_b32 v36, 0
    v_mov_b32 v37, 0                   ; carry = 0
    s_cmp_eq_u32 s30, 0
    s_cbranch_scc1 K1_CARRY_DONE
    s_mov_b32 s35, 0x40000
    """)
    a.label("K1_POLL")
    a("""
    global_load_dword v35, v34, s[18:19] sc1
    s_waitcnt vmcnt(0)
    v_readfirstlane_b32 s29, v35
    s_nop 3
    s_cmp_ge_u32 s29, 16
    s_cbranch_scc1 K1_POLL_DONE
    s_sub_u32 s35, s35, 1
    s_cmp_eq_u32 s35, 0
    s_cbranch_scc1 K1_POLL_DONE
    s_sleep 1
    s_branch K1_POLL
    """)
    a.label("K1_POLL_DONE")
    a("v_add_u32 v11, 0x1000, v9")
    EB = 128
    for cc in range(15):
        if cc < 8:
            a(f"global_load_dwordx2 v[{EB+2*cc}:{EB+2*cc+1}], v9, s[16:17] offset:{cc*512} sc1")
        else:
            a(f"global_load_dwordx2 v[{EB+2*cc}:{EB+2*cc+1}], v11, s[16:17] offset:{(cc-8)*512} sc1")
    a("s_waitcnt vmcnt(0)")
    a(f"v_mov_b32 v36, v{EB}")
    a(f"v_mov_b32 v37, v{EB+1}")
    for cc in range(1, 15):
        a(f"s_cmp_le_u32 s30, {cc}")
        a("s_cbranch_scc1 K1_CARRY_DONE")
        cfma(a, 38, 39, 36, 37, 29, 30, EB + 2 * cc, EB + 2 * cc + 1)
        a("v_mov_b32 v36, v38")
        a("v_mov_b32 v37, v39")
    a.label("K1_CARRY_DONE")
    cfma(a, 38, 39, 36, 37, 27, 28, 12, 13)
    cfma(a, 40, 41, 38, 39, 27, 28, 14, 15)
    cfma(a, 42, 43, 40, 41, 27, 28, 16, 17)
    a("""
    v_cmp_lt_u32 vcc, 31, v0
    s_cmp_lg_u32 s26, 0
    s_cbranch_scc1 K1_SEL_HI
    v_cndmask_b32 v44, v36, v38, vcc
    v_cndmask_b32 v45, v37, v39, vcc
    s_branch K1_SEL_DONE
    """)
    a.label("K1_SEL_HI")
    a("""
    s_nop 0
    v_cndmask_b32 v44, v40, v42, vcc
    v_cndmask_b32 v45, v41, v43, vcc
    """)
    a.label("K1_SEL_DONE")
    a("""
    v_mul_f32 v46, v25, v44
    v_fma_f32 v46, -v26, v45, v46
    v_mul_f32 v47, v25, v45
    v_fma_f32 v47, v26, v44, v47
    v_add_f32 v46, v46, v46            ; Wr
    v_mul_f32 v47, -2.0, v47           ; Wi
    """)
    W = [(46, 47), (48, 49)]
    cur = 0
    for j in range(16):
        outs = []
        for h in range(2):
            t = 2 * j + h
            wr_, wi_ = W[cur]
            o_re, o_im = 50 + 2 * h, 51 + 2 * h
            a(f"v_fma_f32 v{o_re}, v23, v{gr(t)}, v{wr_}")
            a(f"v_fma_f32 v{o_im}, -v23, v{gi(t)}, v{wi_}")
            a(f"v_fma_f32 v{o_re}, -v24, v{gi(t)}, v{o_re}")
            a(f"v_fma_f32 v{o_im}, -v24, v{gr(t)}, v{o_im}")
            if t < 31:
                nr, ni = W[1 - cur]
                a(f"v_mul_f32 v{nr}, v20, v{wr_}")
                a(f"v_mul_f32 v{ni}, v20, v{wi_}")
                a(f"v_fmac_f32 v{nr}, v21, v{wi_}")
                a(f"v_fmac_f32 v{ni}, v22, v{wr_}")
                cur = 1 - cur
        a(f"v_cvt_pk_bf16_f32 v{64+j}, v50, v52")
        a(f"v_cvt_pk_bf16_f32 v{80+j}, v51, v53")
    PB = K1_PB
    a(f"""
    s_lshl_b32 s29, s27, 5
    v_add_u32 v9, s29, v7
    v_mul_u32_u24 v9, {PB}, v9
    s_lshl_b32 s29, s26, 7
    v_lshlrev_b32 v10, 6, v8
    v_add3_u32 v9, v9, v10, s29
    """)
    for i in range(4):
        a(f"ds_write_b128 v9, v[{64+4*i}:{67+4*i}] offset:{16*i}")
    for i in range(4):
        a(f"ds_write_b128 v9, v[{80+4*i}:{83+4*i}] offset:{64*PB + 16*i}")
    a(f"""
    v_lshrrev_b32 v10, 4, v0
    v_lshlrev_b32 v10, 3, v10
    v_lshrrev_b32 v11, 2, v0
    v_and_b32 v11, 3, v11
    v_add_u32 v10, v10, v11
    v_mul_u32_u24 v10, {PB}, v10
    v_and_b32 v11, 3, v0
    v_lshlrev_b32 v11, 3, v11
    s_lshl_b32 s29, s28, 6
    v_add3_u32 v10, v10, v11, s29
    v_and_b32 v11, 15, v0
    v_lshlrev_b32 v11, 12, v11
    v_lshrrev_b32 v12, 4, v0
    v_lshlrev_b32 v12, 4, v12
    v_add_u32 v11, v11, v12            ; v11
    v_add_u32 v12, 0x10000, v11        ; v12 (+16 rows)
    s_lshl_b32 s29, s30, 19            ; 128c*4096
    s_lshl_b32 s35, s28, 17            ; 32w*4096
    s_add_u32 s29, s29, s35
    s_lshl_b32 s35, s31, 7             ; pt*128
    s_add_u32 s29, s29, s35
    s_mov_b32 s40, s16
    s_and_b32 s41, s17, 0xffff
    s_mov_b32 s42, {L*2048*2}
    s_mov_b32 s43, 0x00020000
    s_waitcnt lgkmcnt(0)
    s_barrier
    """)
    idx = 0
    regs = []
    for j in range(2):
        for im in range(2):
            for q in range(2):
                r0 = 64 + 4 * idx
                off = (64 * im + 32 * q) * PB + 32 * j
                a(f"ds_read_b64_tr_b16 v[{r0}:{r0+1}], v10 offset:{off}")
                a(f"ds_read_b64_tr_b16 v[{r0+2}:{r0+3}], v10 offset:{off + 4*PB}")
                regs.append((r0, j, im, q))
                idx += 1
    for n_, (r0, j, im, q) in enumerate(regs):
        a(f"s_waitcnt lgkmcnt({2*(7-n_)})")
        va = 11 if j == 0 else 12
        a(f"buffer_store_dwordx4 v[{r0}:{r0+3}], v{va}, s[40:43], s29 offen offset:{im*2048 + q*64}")
    a.label("K1_END")
    a("s_endpgm")


K2_STAGE = 24576
K2_NB = 4
K2_LDS = K2_STAGE * K2_NB


def gen_k2(a):
    a.label("ssm_k2_kernel")
    a("""
    s_cmp_ge_u32 s2, 256
    s_cbranch_scc1 K2_END
    s_load_dwordx2 s[4:5], s[0:1], 88     ; ws (h')
    s_load_dwordx2 s[8:9], s[0:1], 40     ; C_re
    s_load_dwordx2 s[12:13], s[0:1], 48   ; C_im
    s_load_dwordx2 s[16:17], s[0:1], 0    ; x
    s_load_dwordx2 s[20:21], s[0:1], 72   ; out
    s_load_dwordx2 s[24:25], s[0:1], 64   ; Dskip
    s_and_b32 s26, s2, 7
    s_lshr_b32 s27, s2, 3
    s_and_b32 s30, s26, 3
    s_lshl_b32 s30, s30, 2
    s_and_b32 s31, s27, 3
    s_add_u32 s30, s30, s31            ; s30 = c
    s_lshr_b32 s31, s26, 2
    s_lshl_b32 s31, s31, 3
    s_lshr_b32 s27, s27, 2
    s_add_u32 s31, s31, s27            ; s31 = dt
    v_lshrrev_b32 v1, 6, v0
    v_and_b32 v0, 63, v0
    v_readfirstlane_b32 s28, v1        ; wave
    s_nop 3
    s_and_b32 s26, s28, 1              ; wm
    s_lshr_b32 s27, s28, 1             ; kh
    v_and_b32 v14, 31, v0              ; n / m
    v_lshrrev_b32 v15, 5, v0           ; hb
    v_lshrrev_b32 v3, 4, v0
    v_xor_b32 v3, v3, v0
    v_and_b32 v3, 3, v3
    v_lshlrev_b32 v3, 4, v3
    v_lshrrev_b32 v1, 2, v0
    v_lshlrev_b32 v2, 11, v1
    v_add_u32 v4, v2, v3               ; v4 = vOffC
    v_lshlrev_b32 v1, 12, v1
    v_add_u32 v1, v1, v3               ; v1 = vOffH
    v_add_u32 v2, 0x10000, v1          ; v2 = vOffH2
    v_lshrrev_b32 v3, 2, v14
    v_and_b32 v3, 3, v3
    v_xor_b32 v3, v15, v3
    v_lshlrev_b32 v3, 4, v3            ; (hb ^ ((m>>2)&3))*16
    s_lshl_b32 s29, s27, 13
    s_lshl_b32 s32, s26, 12
    s_add_u32 s29, s29, s32
    v_lshlrev_b32 v5, 6, v14
    v_add3_u32 v5, v5, v3, s29
    v_xor_b32 v6, 32, v5               ; v6 = vA_k1
    v_lshrrev_b32 v7, 4, v14
    v_lshlrev_b32 v7, 11, v7
    v_and_b32 v8, 15, v14
    v_lshlrev_b32 v8, 6, v8
    v_add_u32 v7, v7, v8
    s_lshl_b32 s29, s27, 10
    s_add_u32 s29, s29, 16384
    v_add3_u32 v7, v7, v3, s29         ; v7 = vB_k0
    v_xor_b32 v8, 32, v7               ; v8 = vB_k1
    v_add_u32 v9, 0xc000, v5
    v_add_u32 v10, 0xc000, v6
    v_add_u32 v11, 0xc000, v7
    v_add_u32 v12, 0xc000, v8
    s_waitcnt lgkmcnt(0)
    """)
    srd(a, 4, L * 2048 * 2)
    srd(a, 8, D * P * 2)
    srd(a, 12, D * P * 2)
    srd(a, 16, L * D * 2)
    srd(a, 20, L * D * 4)
    a("""
    s_lshl_b32 s32, s30, 19            ; 128c*4096
    s_lshl_b32 s33, s28, 17            ; 32w*4096
    s_add_u32 s32, s32, s33            ; s32 = sH
    s_add_u32 s36, s32, 2048           ; s36 = sHi
    s_lshl_b32 s33, s31, 17            ; 64dt*2048
    s_lshl_b32 s34, s28, 15            ; 16w*2048
    s_add_u32 s33, s33, s34            ; s33 = sC
    s_lshl_b32 s34, s28, 11            ; w*2048
    """)

    def dma_stage(b):
        base = b * K2_STAGE
        a(f"s_add_u32 m0, s34, {base}")
        a("s_nop 0")
        a("buffer_load_dwordx4 v1, s[4:7], s32 offen lds")
        a(f"s_add_u32 m0, s34, {base + 1024}")
        a("s_nop 0")
        a("buffer_load_dwordx4 v2, s[4:7], s32 offen lds")
        a(f"s_add_u32 m0, s34, {base + 8192}")
        a("s_add_u32 s32, s32, 64")
        a("buffer_load_dwordx4 v1, s[4:7], s36 offen lds")
        a(f"s_add_u32 m0, s34, {base + 8192 + 1024}")
        a("s_nop 0")
        a("buffer_load_dwordx4 v2, s[4:7], s36 offen lds")
        a(f"s_add_u32 m0, s34, {base + 16384}")
        a("s_add_u32 s36, s36, 64")
        a("buffer_load_dwordx4 v4, s[8:11], s33 offen lds")
        a(f"s_add_u32 m0, s34, {base + 16384 + 1024}")
        a("s_nop 0")
        a("buffer_load_dwordx4 v4, s[12:15], s33 offen lds")
        a("s_add_u32 s33, s33, 64")

    for b in range(3):
        dma_stage(b)
    for r in range(64, 128):
        a(f"v_mov_b32 v{r}, 0")

    Pset = (32, 36, 40, 44)
    Qset = (48, 52, 56, 60)
    ACC = [[64, 80], [96, 112]]

    def reads(b, ks, s):
        A0, A1, B0, B1 = s
        if b < 2:
            va = 5 if ks == 0 else 6
            vb = 7 if ks == 0 else 8
            base = b * K2_STAGE
        else:
            va = 9 if ks == 0 else 10
            vb = 11 if ks == 0 else 12
            base = (b - 2) * K2_STAGE
        a(f"ds_read_b128 v[{A0}:{A0+3}], v{va} offset:{base}")
        a(f"ds_read_b128 v[{B0}:{B0+3}], v{vb} offset:{base}")
        a(f"ds_read_b128 v[{B1}:{B1+3}], v{vb} offset:{base + 4096}")
        a(f"ds_read_b128 v[{A1}:{A1+3}], v{va} offset:{base + 2048}")

    def mfmas(s):
        A0, A1, B0, B1 = s
        mfma(a, ACC[0][0], A0, B0)
        mfma(a, ACC[0][1], A0, B1)
        mfma(a, ACC[1][0], A1, B0)
        mfma(a, ACC[1][1], A1, B1)

    a("s_waitcnt vmcnt(12)")
    a("s_barrier")
    reads(0, 0, Pset)

    def stage(b, wait, dma, prefetch):
        if wait is not None:
            a(f"s_waitcnt vmcnt({wait})")
            a("s_barrier")
        if dma:
            dma_stage((b + 3) % 4)
        reads(b, 1, Qset)
        a("s_waitcnt lgkmcnt(4)")
        mfmas(Pset)
        if prefetch:
            reads((b + 1) % 4, 0, Pset)
            a("s_waitcnt lgkmcnt(4)")
        else:
            a("s_waitcnt lgkmcnt(0)")
        mfmas(Qset)

    a("s_mov_b32 s35, 7")
    a.label("K2_LOOP")
    for b in range(4):
        stage(b, 6, True, True)
    a("s_sub_u32 s35, s35, 1")
    a("s_cmp_lg_u32 s35, 0")
    a("s_cbranch_scc1 K2_LOOP")
    stage(0, 6, True, True)
    stage(1, 6, False, True)
    stage(2, 0, False, True)
    a("""
    v_lshrrev_b32 v16, 4, v0
    v_and_b32 v17, 15, v0
    v_lshlrev_b32 v18, 11, v16
    v_lshl_add_u32 v18, v17, 3, v18
    s_lshl_b32 s29, s30, 18            ; 128c*2048
    s_lshl_b32 s37, s28, 16            ; 32w*2048
    s_add_u32 s29, s29, s37
    s_lshl_b32 s37, s31, 7             ; 64dt*2
    s_add_u32 s29, s29, s37
    v_lshlrev_b32 v19, 3, v17
    v_add_u32 v19, s37, v19
    global_load_dwordx2 v[20:21], v19, s[24:25]
    """)
    for i in range(8):
        a(f"buffer_load_dwordx2 v[{128+2*i}:{129+2*i}], v18, s[16:19], s29 offen")
        if i < 7:
            a("s_add_u32 s29, s29, 8192")
    stage(3, None, False, False)
    a("s_nop 15")
    a("s_nop 3")
    a("s_barrier")
    a("""
    s_lshl_b32 s29, s27, 15            ; kh*32768
    s_lshl_b32 s37, s26, 14            ; 64wm*256
    s_add_u32 s29, s29, s37
    v_lshlrev_b32 v1, 10, v15          ; 4hb*256
    v_lshl_add_u32 v1, v14, 2, v1
    v_add_u32 v1, s29, v1
    """)
    for rb in range(2):
        for nb in range(2):
            for r in range(16):
                off = (32 * rb + (r & 3) + 8 * (r >> 2)) * 256 + nb * 128
                a(f"ds_write_b32 v1, v{ACC[rb][nb]+r} offset:{off}")
    a("""
    s_lshl_b32 s29, s28, 13            ; 32w*256
    v_lshlrev_b32 v2, 8, v16
    v_lshl_add_u32 v2, v17, 4, v2
    v_add_u32 v2, s29, v2
    v_lshlrev_b32 v3, 12, v16
    v_lshl_add_u32 v3, v17, 4, v3
    s_lshl_b32 s29, s30, 19
    s_lshl_b32 s37, s28, 17
    s_add_u32 s29, s29, s37
    s_lshl_b32 s37, s31, 8
    s_add_u32 s29, s29, s37
    s_waitcnt vmcnt(0) lgkmcnt(0)
    s_barrier
    v_lshlrev_b32 v22, 16, v20
    v_and_b32 v23, 0xffff0000, v20
    v_lshlrev_b32 v24, 16, v21
    v_and_b32 v25, 0xffff0000, v21
    """)
    for i in range(8):
        a(f"ds_read_b128 v[{32+8*(i%4)}:{35+8*(i%4)}], v2 offset:{i*1024}")
        a(f"ds_read_b128 v[{36+8*(i%4)}:{39+8*(i%4)}], v2 offset:{32768 + i*1024}")
        if i % 4 == 3 or True:
            pass
        xr = 128 + 2 * i
        A = 32 + 8 * (i % 4)
        a(f"""
        v_lshlrev_b32 v26, 16, v{xr}
        v_and_b32 v27, 0xffff0000, v{xr}
        v_lshlrev_b32 v28, 16, v{xr+1}
        v_and_b32 v29, 0xffff0000, v{xr+1}
        v_mul_f32 v26, v26, v22
        v_mul_f32 v27, v27, v23
        v_mul_f32 v28, v28, v24
        v_mul_f32 v29, v29, v25
        v_cvt_pk_bf16_f32 v26, v26, v27
        v_cvt_pk_bf16_f32 v28, v28, v29
        v_and_b32 v27, 0xffff0000, v26
        v_lshlrev_b32 v26, 16, v26
        v_and_b32 v29, 0xffff0000, v28
        v_lshlrev_b32 v28, 16, v28
        s_waitcnt lgkmcnt(0)
        v_add_f32 v{A}, v{A}, v{A+4}
        v_add_f32 v{A+1}, v{A+1}, v{A+5}
        v_add_f32 v{A+2}, v{A+2}, v{A+6}
        v_add_f32 v{A+3}, v{A+3}, v{A+7}
        v_add_f32 v{A}, v{A}, v26
        v_add_f32 v{A+1}, v{A+1}, v27
        v_add_f32 v{A+2}, v{A+2}, v28
        v_add_f32 v{A+3}, v{A+3}, v29
        buffer_store_dwordx4 v[{A}:{A+3}], v3, s[20:23], s29 offen
        s_add_u32 s29, s29, 16384
        """)
    a.label("K2_END")
    a("s_endpgm")


HEADER = """; S5 SSM (GEMM -> diagonal complex scan -> GEMM), generated by work/gen.py (hand-designed schedule)
; @launch kernel=ssm_k1_kernel grid=(256,1,1) block=(256,1,1) lds={k1lds}
; @launch kernel=ssm_k2_kernel grid=(256,1,1) block=(256,1,1) lds={k2lds}
.amdgcn_target "amdgcn-amd-amdhsa--gfx950"
.text
"""

KD = """
.amdhsa_kernel {name}
  .amdhsa_next_free_vgpr {vgpr}
  .amdhsa_next_free_sgpr 64
  .amdhsa_accum_offset {vgpr}
  .amdhsa_group_segment_fixed_size 0
  .amdhsa_kernarg_size 96
  .amdhsa_user_sgpr_count 2
  .amdhsa_user_sgpr_kernarg_segment_ptr 1
  .amdhsa_system_sgpr_workgroup_id_x 1
  .amdhsa_float_denorm_mode_32 3
  .amdhsa_float_denorm_mode_16_64 3
.end_amdhsa_kernel
"""


def main():
    out = HEADER.format(k1lds=K1_LDS, k2lds=K2_LDS)
    a = Asm()
    a.lines.append(".globl ssm_k1_kernel\n.p2align 8\n.type ssm_k1_kernel,@function")
    gen_k1(a)
    a.lines.append(".globl ssm_k2_kernel\n.p2align 8\n.type ssm_k2_kernel,@function")
    gen_k2(a)
    out += a.text()
    out += '.section .rodata,"a"\n.p2align 6\n'
    out += KD.format(name="ssm_k1_kernel", vgpr=160)
    out += ".p2align 6\n"
    out += KD.format(name="ssm_k2_kernel", vgpr=144)
    path = sys.argv[1] if len(sys.argv) > 1 else "standalone__ssm_conv_s5__prompt.s"
    open(path, "w").write(out)
    print("wrote", path, len(out))


if __name__ == "__main__":
    main()
```

```python
import sys, os
NOCOMP = int(os.environ.get("NOCOMP", "0"))
NODMA = int(os.environ.get("NODMA", "0"))
STAMP = int(os.environ.get("STAMP", "0"))
WS_STAMP = 16 << 20


def stamp(a, idx, wsreg, kern):
    if not STAMP:
        return
    a(f"""
    s_memrealtime s[44:45]
    s_lshl_b32 s46, s2, 7
    s_add_u32 s46, s46, {WS_STAMP + idx*8} + {kern}*65536
    s_waitcnt lgkmcnt(0)
    v_mov_b32 v250, s44
    v_mov_b32 v251, s45
    v_mov_b32 v252, s46
    s_cmp_lg_u32 s28, 0
    s_cbranch_scc1 ST_{kern}_{idx}
    v_cmp_eq_u32 vcc, 0, v0
    s_and_saveexec_b64 s[46:47], vcc
    global_store_dwordx2 v252, v[250:251], s[{wsreg}:{wsreg+1}]
    s_mov_b64 exec, s[46:47]
    """)
    a.label(f"ST_{kern}_{idx}")

L, D, P = 2048, 1024, 1024
WS_H = 0
WS_AGG = 8 << 20


class Asm:
    def __init__(self):
        self.lines = []

    def __call__(self, s=""):
        for ln in s.strip("\n").split("\n"):
            t = ln.strip()
            self.lines.append(("    " + t) if t else "")

    def label(self, s):
        self.lines.append(s + ":")

    def text(self):
        return "\n".join(self.lines) + "\n"


def srd(a, d, nbytes):
    a(f"s_and_b32 s{d+1}, s{d+1}, 0xffff")
    a(f"s_mov_b32 s{d+2}, {nbytes}")
    a(f"s_mov_b32 s{d+3}, 0x00020000")


def mfma(a, acc, A, B):
    if NOCOMP:
        return
    a(f"v_mfma_f32_32x32x16_bf16 v[{acc}:{acc+15}], v[{A}:{A+3}], v[{B}:{B+3}], v[{acc}:{acc+15}]")


LOG2E_HI = 0x3fb8aa3b
LOG2E_LO = 0x32a57060
LN2 = 0x3f317218


def exp_f32(a, dst, src, t0, t1, sA, sB):
    a(f"s_mov_b32 s{sA}, {LOG2E_HI:#x}")
    a(f"s_mov_b32 s{sB}, {LOG2E_LO:#x}")
    a(f"v_mul_f32 v{t0}, s{sA}, v{src}")
    a(f"v_fma_f32 v{t1}, v{src}, s{sA}, -v{t0}")
    a(f"v_fma_f32 v{t1}, v{src}, s{sB}, v{t1}")
    a(f"v_exp_f32 v{t0}, v{t0}")
    a(f"s_mov_b32 s{sA}, {LN2:#x}")
    a(f"v_mul_f32 v{t1}, s{sA}, v{t1}")
    a(f"s_nop 0")
    a(f"v_fma_f32 v{dst}, v{t0}, v{t1}, v{t0}")


def csq(a, dr, di, sr, si, t):
    a(f"v_mul_f32 v{t}, v{si}, v{si}")
    a(f"v_fma_f32 v{dr}, v{sr}, v{sr}, -v{t}")
    a(f"v_add_f32 v{t}, v{sr}, v{sr}")
    a(f"v_mul_f32 v{di}, v{t}, v{si}")


def cfma(a, dr, di, ar, ai, br, bi, cr, ci):
    a(f"v_fma_f32 v{dr}, v{ar}, v{br}, v{cr}")
    a(f"v_fma_f32 v{di}, v{ar}, v{bi}, v{ci}")
    a(f"v_fma_f32 v{dr}, -v{ai}, v{bi}, v{dr}")
    a(f"v_fma_f32 v{di}, v{ai}, v{br}, v{di}")


WG_DECODE = """
    s_and_b32 s26, s2, 7
    s_lshr_b32 s27, s2, 3
    s_and_b32 s30, s26, 3
    s_lshl_b32 s30, s30, 2
    s_and_b32 s31, s27, 3
    s_add_u32 s30, s30, s31            ; s30 = chunk
    s_lshr_b32 s31, s26, 2
    s_lshl_b32 s31, s31, 3
    s_lshr_b32 s27, s27, 2
    s_add_u32 s31, s31, s27
    v_lshrrev_b32 v1, 6, v0
    v_and_b32 v0, 63, v0               ; v0 = lane
    v_readfirstlane_b32 s28, v1        ; s28 = wave
    s_nop 3
"""


def compute_stage(a, rd, mf, sets):
    rd(0, sets[0])
    for ks in range(4):
        if ks < 3:
            rd(ks + 1, sets[(ks + 1) & 1])
            a("s_waitcnt lgkmcnt(4)")
        else:
            a("s_waitcnt lgkmcnt(0)")
        mf(sets[ks & 1])


K1_STAGE = 32768
K1_NB = 4
K1_AGG = K1_STAGE * K1_NB
K1_LDS = K1_AGG + 2048
K1_PB = 272


def k1_dma_stage(a, b):
    if NODMA:
        return
    base = b * K1_STAGE
    for j in range(4):
        a(f"s_add_u32 m0, s34, {base + j*1024}")
        a("s_nop 0")
        a(f"buffer_load_dwordx4 v{1+j}, s[4:7], s32 offen lds")
    for j in range(2):
        a(f"s_add_u32 m0, s38, {base + 16384 + j*1024}")
        a("s_nop 0")
        a(f"buffer_load_dwordx4 v{1+j}, s[8:11], s33 offen lds")
    for j in range(2):
        a(f"s_add_u32 m0, s38, {base + 24576 + j*1024}")
        a("s_nop 0")
        a(f"buffer_load_dwordx4 v{1+j}, s[12:15], s33 offen lds")
    a("s_add_u32 s32, s32, 128")
    a("s_add_u32 s33, s33, 128")


def gen_k1(a):
    a.label("ssm_k1_kernel")
    a("""
    s_cmp_ge_u32 s2, 256
    s_cbranch_scc1 K1_END
    s_load_dwordx2 s[4:5], s[0:1], 0
    s_load_dwordx2 s[8:9], s[0:1], 24
    s_load_dwordx2 s[12:13], s[0:1], 32
    s_load_dwordx2 s[16:17], s[0:1], 88
    s_load_dwordx2 s[18:19], s[0:1], 80
    s_load_dwordx2 s[20:21], s[0:1], 8
    s_load_dwordx2 s[22:23], s[0:1], 16
    s_load_dwordx2 s[24:25], s[0:1], 56
    """)
    a(WG_DECODE)
    a(f"""
    s_cmp_lt_u32 s28, 4
    s_cbranch_scc1 K1_MAIN
    s_sub_u32 s28, s28, 4
    v_lshrrev_b32 v1, 3, v0
    v_lshlrev_b32 v1, 11, v1
    v_lshrrev_b32 v2, 4, v0
    v_xor_b32 v2, v2, v0
    v_and_b32 v2, 7, v2
    v_lshlrev_b32 v2, 4, v2
    v_add_u32 v1, v1, v2
    v_xor_b32 v2, 64, v1
    v_add_u32 v2, 0x4000, v2
    v_add_u32 v3, 0x8000, v1
    v_add_u32 v4, 0x8000, v2
    s_lshl_b32 s32, s30, 18
    s_lshl_b32 s33, s28, 16
    s_add_u32 s32, s32, s33
    s_lshl_b32 s33, s31, 17
    s_lshl_b32 s34, s28, 15
    s_add_u32 s33, s33, s34
    s_lshl_b32 s34, s28, 12
    s_lshl_b32 s38, s28, 11
    s_waitcnt lgkmcnt(0)
    """)
    srd(a, 4, L * D * 2)
    srd(a, 8, P * D * 2)
    srd(a, 12, P * D * 2)
    for b in range(3):
        k1_dma_stage(a, b)
    a("s_mov_b32 s35, 3")
    a.label("K1_PLOOP")
    for b in range(4):
        a("s_waitcnt vmcnt(16)")
        a("s_barrier")
        k1_dma_stage(a, (b + 3) % 4)
    a("s_sub_u32 s35, s35, 1")
    a("s_cmp_lg_u32 s35, 0")
    a("s_cbranch_scc1 K1_PLOOP")
    a("s_waitcnt vmcnt(16)")
    a("s_barrier")
    k1_dma_stage(a, 3)
    a("s_waitcnt vmcnt(16)")
    a("s_barrier")
    a("s_waitcnt vmcnt(8)")
    a("s_barrier")
    a("s_waitcnt vmcnt(0)")
    a("s_barrier")
    a("s_endpgm")
    a.label("K1_MAIN")
    if STAMP:
        a("s_waitcnt lgkmcnt(0)")
    stamp(a, 0, 16, 0)
    a("""
    s_lshr_b32 s26, s28, 1             ; s26 = wr
    s_and_b32 s27, s28, 1              ; s27 = wc
    v_and_b32 v7, 31, v0               ; n / m
    v_lshrrev_b32 v8, 5, v0            ; hb
    v_lshrrev_b32 v9, 2, v7
    v_and_b32 v9, 1, v9
    v_lshlrev_b32 v9, 5, v9
    v_and_b32 v10, 3, v7
    v_add_u32 v9, v9, v10
    v_lshrrev_b32 v10, 3, v7
    v_lshlrev_b32 v10, 2, v10
    v_add_u32 v9, v9, v10
    s_lshl_b32 s29, s26, 6
    v_add_u32 v9, s29, v9              ; T0
    v_lshrrev_b32 v10, 1, v9
    v_and_b32 v10, 7, v10
    v_xor_b32 v10, v8, v10
    v_lshlrev_b32 v10, 4, v10
    v_lshl_add_u32 v192, v9, 7, v10
    s_lshl_b32 s29, s27, 5
    v_add_u32 v9, s29, v7
    v_lshrrev_b32 v10, 1, v9
    v_and_b32 v10, 7, v10
    v_xor_b32 v10, v8, v10
    v_lshlrev_b32 v10, 4, v10
    v_lshl_add_u32 v196, v9, 7, v10
    v_add_u32 v196, 0x4000, v196
    """)
    for ks in range(1, 4):
        a(f"v_xor_b32 v{192+ks}, {32*ks}, v192")
        a(f"v_xor_b32 v{196+ks}, {32*ks}, v196")
    for i in range(8):
        a(f"v_add_u32 v{200+i}, 0x10000, v{192+i}")
    a("""
    s_lshl_b32 s29, s31, 6
    s_lshl_b32 s32, s27, 5
    s_add_u32 s29, s29, s32
    v_add_u32 v9, s29, v7
    v_lshlrev_b32 v9, 1, v9
    s_waitcnt lgkmcnt(0)
    """)
    a(f"""
    global_load_ushort v10, v9, s[20:21]
    global_load_ushort v11, v9, s[22:23]
    global_load_ushort v12, v9, s[24:25]
    s_cmp_lg_u32 s28, 0
    s_cbranch_scc1 K1_NOCLR
    s_lshl_b32 s29, s31, 14
    s_lshl_b32 s32, s30, 10
    s_add_u32 s29, s29, s32
    s_add_u32 s29, s29, {WS_AGG}
    v_lshlrev_b32 v1, 4, v0
    v_add_u32 v1, s29, v1
    v_mov_b32 v32, 0
    v_mov_b32 v33, 0
    v_mov_b32 v34, 0
    v_mov_b32 v35, 0
    s_lshl_b32 s29, s31, 2
    v_mov_b32 v2, s29
    v_mov_b32 v3, 1
    global_store_dwordx4 v1, v[32:35], s[16:17] sc1
    s_waitcnt vmcnt(0)
    v_cmp_eq_u32 vcc, 0, v0
    s_and_saveexec_b64 s[36:37], vcc
    global_atomic_add v2, v3, s[18:19]
    s_mov_b64 exec, s[36:37]
    s_branch K1_CLRD
    """)
    a.label("K1_NOCLR")
    a("s_waitcnt vmcnt(0)")
    a.label("K1_CLRD")
    for r in range(64, 128):
        a(f"v_mov_b32 v{r}, 0")

    a(f"""
    v_lshlrev_b32 v10, 16, v10
    v_lshlrev_b32 v11, 16, v11
    v_lshlrev_b32 v12, 16, v12
    """)
    exp_f32(a, 13, 12, 14, 15, 36, 37)
    a("""
    v_cvt_pk_bf16_f32 v13, v13, v13
    v_lshlrev_b32 v13, 16, v13
    v_mul_f32 v14, v13, v10
    v_mul_f32 v15, v13, v11
    """)
    exp_f32(a, 16, 14, 17, 18, 36, 37)
    a("""
    v_mul_f32 v17, 0.15915494, v15
    v_fract_f32 v17, v17
    v_sin_f32 v18, v17
    v_cos_f32 v19, v17
    s_nop 0
    v_mul_f32 v20, v16, v19            ; Lr
    v_mul_f32 v21, v16, v18            ; Li
    v_sub_f32 v22, 0, v21              ; -Li
    v_add_f32 v13, -1.0, v20
    v_mul_f32 v14, v13, v10
    v_fma_f32 v14, v21, v11, v14
    v_mul_f32 v15, v21, v10
    v_fma_f32 v15, -v13, v11, v15
    v_mul_f32 v16, v10, v10
    v_fma_f32 v16, v11, v11, v16
    v_rcp_f32 v17, v16
    s_nop 0
    v_fma_f32 v18, -v16, v17, 1.0
    v_fma_f32 v17, v17, v18, v17
    v_mul_f32 v23, v14, v17
    v_mul_f32 v24, v15, v17
    v_mul_f32 v25, v23, v20
    v_fma_f32 v25, -v24, v21, v25
    v_mul_f32 v26, v23, v21
    v_fma_f32 v26, v24, v20, v26
    v_add_f32 v23, v23, v23
    v_add_f32 v24, v24, v24
    """)
    csq(a, 13, 14, 20, 21, 17)
    csq(a, 15, 16, 13, 14, 17)
    csq(a, 13, 14, 15, 16, 17)
    csq(a, 15, 16, 13, 14, 17)
    csq(a, 27, 28, 15, 16, 17)
    csq(a, 13, 14, 27, 28, 17)
    csq(a, 29, 30, 13, 14, 17)

    ACC = [[64, 80], [96, 112]]
    sets = [(32, 36, 40, 44), (48, 52, 56, 60)]

    def stage(b, wait, dma):
        a("s_barrier")

        def rd(ks, s):
            if NOCOMP > 1:
                return
            A0, A1, B0, B1 = s
            va = (192 if b < 2 else 200) + ks
            vb = (196 if b < 2 else 204) + ks
            base = (b & 1) * K1_STAGE
            a(f"ds_read_b128 v[{A0}:{A0+3}], v{va} offset:{base}")
            a(f"ds_read_b128 v[{B0}:{B0+3}], v{vb} offset:{base}")
            a(f"ds_read_b128 v[{B1}:{B1+3}], v{vb} offset:{base + 8192}")
            a(f"ds_read_b128 v[{A1}:{A1+3}], v{va} offset:{base + 2048}")

        def mf(s):
            A0, A1, B0, B1 = s
            mfma(a, ACC[0][0], A0, B0)
            mfma(a, ACC[0][1], A0, B1)
            mfma(a, ACC[1][0], A1, B0)
            mfma(a, ACC[1][1], A1, B1)
        compute_stage(a, rd, mf, sets)

    stamp(a, 1, 16, 0)
    a("s_mov_b32 s35, 4")
    a.label("K1_LOOP")
    for b in range(4):
        stage(b, 16, True)
    a("s_sub_u32 s35, s35, 1")
    a("s_cmp_lg_u32 s35, 0")
    a("s_cbranch_scc1 K1_LOOP")
    a("s_nop 15")
    a("s_nop 3")
    stamp(a, 2, 16, 0)

    def gr(t):
        return ACC[t // 16][0] + (t % 16)

    def gi(t):
        return ACC[t // 16][1] + (t % 16)

    for t in range(1, 32):
        a(f"v_fmac_f32 v{gr(t)}, v20, v{gr(t-1)}")
        a(f"v_fmac_f32 v{gi(t)}, v20, v{gi(t-1)}")
        a(f"v_fmac_f32 v{gr(t)}, v22, v{gi(t-1)}")
        a(f"v_fmac_f32 v{gi(t)}, v21, v{gr(t-1)}")

    a(f"""
    s_lshl_b32 s29, s27, 5
    v_add_u32 v9, s29, v7
    v_lshlrev_b32 v10, 3, v9
    v_add_u32 v10, {K1_AGG}, v10
    s_lshl_b32 s29, s26, 1
    v_add_u32 v11, s29, v8
    v_lshlrev_b32 v11, 9, v11
    v_add_u32 v11, v11, v10
    ds_write2_b32 v11, v{gr(31)}, v{gi(31)} offset0:0 offset1:1
    s_lshl_b32 s29, s31, 2
    v_mov_b32 v34, s29
    s_mov_b32 s35, 0x40000
    """)
    a.label("K1_POLL")
    a("""
    global_load_dword v35, v34, s[18:19] sc1
    s_waitcnt vmcnt(0)
    v_readfirstlane_b32 s29, v35
    s_nop 3
    s_cmp_ge_u32 s29, 16
    s_cbranch_scc1 K1_POLL_DONE
    s_sub_u32 s35, s35, 1
    s_cmp_eq_u32 s35, 0
    s_cbranch_scc1 K1_POLL_DONE
    s_sleep 2
    s_branch K1_POLL
    """)
    a.label("K1_POLL_DONE")
    stamp(a, 3, 16, 0)
    a(f"""
    s_waitcnt lgkmcnt(0)
    s_barrier
    ds_read_b64 v[12:13], v10
    ds_read_b64 v[14:15], v10 offset:512
    ds_read_b64 v[16:17], v10 offset:1024
    ds_read_b64 v[18:19], v10 offset:1536
    s_lshl_b32 s29, s31, 14
    s_add_u32 s29, s29, {WS_AGG}
    v_lshlrev_b32 v9, 4, v9
    v_add_u32 v9, s29, v9
    s_lshl_b32 s29, s30, 10
    v_add_u32 v11, s29, v9
    s_waitcnt lgkmcnt(0)
    """)
    cfma(a, 36, 37, 12, 13, 27, 28, 14, 15)
    cfma(a, 38, 39, 36, 37, 27, 28, 16, 17)
    cfma(a, 32, 34, 38, 39, 27, 28, 18, 19)
    a("""
    v_mov_b32 v33, -1
    v_mov_b32 v35, -1
    s_cmp_lg_u32 s26, 0
    s_cbranch_scc1 K1_NOPUB
    v_cmp_gt_u32 vcc, 32, v0
    s_and_saveexec_b64 s[36:37], vcc
    global_store_dwordx4 v11, v[32:35], s[16:17] sc1
    s_mov_b64 exec, s[36:37]
    """)
    a.label("K1_NOPUB")
    a("""
    v_mov_b32 v36, 0
    v_mov_b32 v37, 0
    s_cmp_eq_u32 s30, 0
    s_cbranch_scc1 K1_CARRY_DONE
    v_add_u32 v40, 0x1000, v9
    v_add_u32 v41, 0x2000, v9
    v_add_u32 v42, 0x3000, v9
    s_mov_b32 s35, 0x40000
    """)
    EB = 128
    a.label("K1_GPOLL")
    for cc in range(15):
        if cc > 0:
            a(f"s_cmp_le_u32 s30, {cc}")
            a("s_cbranch_scc1 K1_GP_ISSUED")
        vb = [9, 40, 41, 42][cc // 4]
        a(f"global_load_dwordx4 v[{EB+4*cc}:{EB+4*cc+3}], v{vb}, s[16:17] offset:{(cc%4)*1024} sc1")
    a.label("K1_GP_ISSUED")
    a("s_waitcnt vmcnt(0)")
    a("v_mov_b32 v38, -1")
    for cc in range(15):
        if cc > 0:
            a(f"s_cmp_le_u32 s30, {cc}")
            a("s_cbranch_scc1 K1_GP_CHECKED")
        a(f"v_and_b32 v38, v38, v{EB+4*cc+1}")
        a(f"v_and_b32 v38, v38, v{EB+4*cc+3}")
    a.label("K1_GP_CHECKED")
    a("""
    v_cmp_ne_u32 vcc, -1, v38
    s_cbranch_vccz K1_GP_DONE
    s_sub_u32 s35, s35, 1
    s_cmp_eq_u32 s35, 0
    s_cbranch_scc1 K1_GP_DONE
    s_sleep 1
    s_branch K1_GPOLL
    """)
    a.label("K1_GP_DONE")
    a(f"v_mov_b32 v36, v{EB}")
    a(f"v_mov_b32 v37, v{EB+2}")
    for cc in range(1, 15):
        a(f"s_cmp_le_u32 s30, {cc}")
        a("s_cbranch_scc1 K1_CARRY_DONE")
        cfma(a, 38, 39, 36, 37, 29, 30, EB + 4 * cc, EB + 4 * cc + 2)
        a("v_mov_b32 v36, v38")
        a("v_mov_b32 v37, v39")
    a.label("K1_CARRY_DONE")
    stamp(a, 4, 16, 0)
    cfma(a, 38, 39, 36, 37, 27, 28, 12, 13)
    cfma(a, 40, 41, 38, 39, 27, 28, 14, 15)
    cfma(a, 42, 43, 40, 41, 27, 28, 16, 17)
    a("""
    v_cmp_lt_u32 vcc, 31, v0
    s_cmp_lg_u32 s26, 0
    s_cbranch_scc1 K1_SEL_HI
    v_cndmask_b32 v44, v36, v38, vcc
    v_cndmask_b32 v45, v37, v39, vcc
    s_branch K1_SEL_DONE
    """)
    a.label("K1_SEL_HI")
    a("""
    s_nop 0
    v_cndmask_b32 v44, v40, v42, vcc
    v_cndmask_b32 v45, v41, v43, vcc
    """)
    a.label("K1_SEL_DONE")
    a("""
    v_mul_f32 v46, v25, v44
    v_fma_f32 v46, -v26, v45, v46
    v_mul_f32 v47, v25, v45
    v_fma_f32 v47, v26, v44, v47
    v_add_f32 v46, v46, v46
    v_mul_f32 v47, -2.0, v47
    """)
    W = [(46, 47), (48, 49)]
    cur = 0
    for j in range(16):
        for h in range(2):
            t = 2 * j + h
            wr_, wi_ = W[cur]
            o_re, o_im = 50 + 2 * h, 51 + 2 * h
            a(f"v_fma_f32 v{o_re}, v23, v{gr(t)}, v{wr_}")
            a(f"v_fma_f32 v{o_im}, -v23, v{gi(t)}, v{wi_}")
            a(f"v_fma_f32 v{o_re}, -v24, v{gi(t)}, v{o_re}")
            a(f"v_fma_f32 v{o_im}, -v24, v{gr(t)}, v{o_im}")
            if t < 31:
                nr, ni = W[1 - cur]
                a(f"v_mul_f32 v{nr}, v20, v{wr_}")
                a(f"v_mul_f32 v{ni}, v20, v{wi_}")
                a(f"v_fmac_f32 v{nr}, v21, v{wi_}")
                a(f"v_fmac_f32 v{ni}, v22, v{wr_}")
                cur = 1 - cur
        a(f"v_cvt_pk_bf16_f32 v{64+j}, v50, v52")
        a(f"v_cvt_pk_bf16_f32 v{80+j}, v51, v53")
    PB = K1_PB
    a(f"""
    s_lshl_b32 s29, s27, 5
    v_add_u32 v9, s29, v7
    v_mul_u32_u24 v9, {PB}, v9
    s_lshl_b32 s29, s26, 7
    v_lshlrev_b32 v10, 6, v8
    v_add3_u32 v9, v9, v10, s29
    """)
    for i in range(4):
        a(f"ds_write_b128 v9, v[{64+4*i}:{67+4*i}] offset:{16*i}")
    for i in range(4):
        a(f"ds_write_b128 v9, v[{80+4*i}:{83+4*i}] offset:{64*PB + 16*i}")
    a(f"""
    v_lshrrev_b32 v10, 4, v0
    v_lshlrev_b32 v10, 3, v10
    v_lshrrev_b32 v11, 2, v0
    v_and_b32 v11, 3, v11
    v_add_u32 v10, v10, v11
    v_mul_u32_u24 v10, {PB}, v10
    v_and_b32 v11, 3, v0
    v_lshlrev_b32 v11, 3, v11
    s_lshl_b32 s29, s28, 6
    v_add3_u32 v10, v10, v11, s29
    v_and_b32 v11, 15, v0
    v_lshlrev_b32 v11, 12, v11
    v_lshrrev_b32 v12, 4, v0
    v_lshlrev_b32 v12, 4, v12
    v_add_u32 v11, v11, v12
    v_add_u32 v12, 0x10000, v11
    s_lshl_b32 s29, s30, 19
    s_lshl_b32 s35, s28, 17
    s_add_u32 s29, s29, s35
    s_lshl_b32 s35, s31, 7
    s_add_u32 s29, s29, s35
    s_mov_b32 s40, s16
    s_and_b32 s41, s17, 0xffff
    s_mov_b32 s42, {L*2048*2}
    s_mov_b32 s43, 0x00020000
    s_waitcnt lgkmcnt(0)
    s_barrier
    """)
    idx = 0
    regs = []
    for j in range(2):
        for im in range(2):
            for q in range(2):
                r0 = 64 + 4 * idx
                off = (64 * im + 32 * q) * PB + 32 * j
                a(f"ds_read_b64_tr_b16 v[{r0}:{r0+1}], v10 offset:{off}")
                a(f"ds_read_b64_tr_b16 v[{r0+2}:{r0+3}], v10 offset:{off + 4*PB}")
                regs.append((r0, j, im, q))
                idx += 1
    for n_, (r0, j, im, q) in enumerate(regs):
        a(f"s_waitcnt lgkmcnt({2*(7-n_)})")
        va = 11 if j == 0 else 12
        a(f"buffer_store_dwordx4 v[{r0}:{r0+3}], v{va}, s[40:43], s29 offen offset:{im*2048 + q*64}")
    if STAMP:
        a("s_waitcnt vmcnt(0)")
    stamp(a, 5, 16, 0)
    a.label("K1_END")
    a("s_endpgm")


K2_STAGE = 49152
K2_NB = 3
K2_LDS = K2_STAGE * K2_NB


def k2_dma_stage(a, b):
    if NODMA:
        return
    base = b * K2_STAGE
    for j in range(4):
        a(f"s_add_u32 m0, s34, {base + j*1024}")
        a("s_nop 0")
        a(f"buffer_load_dwordx4 v{1+j}, s[4:7], s32 offen lds")
    for j in range(2):
        a(f"s_add_u32 m0, s38, {base + 32768 + j*1024}")
        a("s_nop 0")
        a(f"buffer_load_dwordx4 v{5+j}, s[8:11], s33 offen lds")
    for j in range(4):
        a(f"s_add_u32 m0, s34, {base + 16384 + j*1024}")
        a("s_nop 0")
        a(f"buffer_load_dwordx4 v{1+j}, s[4:7], s36 offen lds")
    for j in range(2):
        a(f"s_add_u32 m0, s38, {base + 40960 + j*1024}")
        a("s_nop 0")
        a(f"buffer_load_dwordx4 v{5+j}, s[12:15], s33 offen lds")
    a("s_add_u32 s32, s32, 128")
    a("s_add_u32 s36, s36, 128")
    a("s_add_u32 s33, s33, 128")


def gen_k2(a):
    a.label("ssm_k2_kernel")
    a("""
    s_cmp_ge_u32 s2, 256
    s_cbranch_scc1 K2_END
    s_load_dwordx2 s[4:5], s[0:1], 88     ; ws (h')
    s_load_dwordx2 s[8:9], s[0:1], 40     ; C_re
    s_load_dwordx2 s[12:13], s[0:1], 48   ; C_im
    s_load_dwordx2 s[16:17], s[0:1], 0    ; x
    s_load_dwordx2 s[20:21], s[0:1], 72   ; out
    s_load_dwordx2 s[24:25], s[0:1], 64   ; Dskip
    """)
    a(WG_DECODE)
    a("""
    s_cmp_lt_u32 s28, 4
    s_cbranch_scc1 K2_MAIN
    s_sub_u32 s28, s28, 4
    v_lshrrev_b32 v7, 4, v0
    v_xor_b32 v7, v7, v0
    v_and_b32 v7, 7, v7
    v_lshlrev_b32 v7, 4, v7
    v_lshrrev_b32 v8, 3, v0
    v_lshl_add_u32 v1, v8, 12, v7
    v_xor_b32 v2, 64, v1
    v_add_u32 v2, 0x8000, v2
    v_add_u32 v3, 0x10000, v1
    v_add_u32 v4, 0x10000, v2
    v_lshl_add_u32 v5, v8, 11, v7
    v_xor_b32 v6, 64, v5
    v_add_u32 v6, 0x4000, v6
    s_lshl_b32 s32, s30, 19
    s_lshl_b32 s33, s28, 17
    s_add_u32 s32, s32, s33
    s_add_u32 s36, s32, 2048
    s_lshl_b32 s33, s31, 17
    s_lshl_b32 s34, s28, 15
    s_add_u32 s33, s33, s34
    s_lshl_b32 s34, s28, 12
    s_lshl_b32 s38, s28, 11
    s_waitcnt lgkmcnt(0)
    """)
    srd(a, 4, L * 2048 * 2)
    srd(a, 8, D * P * 2)
    srd(a, 12, D * P * 2)
    for b in range(2):
        k2_dma_stage(a, b)
    a("s_mov_b32 s35, 4")
    a.label("K2_PLOOP")
    for b in range(3):
        a("s_waitcnt vmcnt(12)")
        a("s_barrier")
        k2_dma_stage(a, (b + 2) % 3)
    a("s_sub_u32 s35, s35, 1")
    a("s_cmp_lg_u32 s35, 0")
    a("s_cbranch_scc1 K2_PLOOP")
    for b in range(2):
        a("s_waitcnt vmcnt(12)")
        a("s_barrier")
        k2_dma_stage(a, (b + 2) % 3)
    a("s_waitcnt vmcnt(12)")
    a("s_barrier")
    a("s_waitcnt vmcnt(0)")
    a("s_barrier")
    a("s_endpgm")
    a.label("K2_MAIN")
    a("""
    s_and_b32 s26, s28, 1              ; wm
    s_lshr_b32 s27, s28, 1             ; kh
    v_and_b32 v14, 31, v0
    v_lshrrev_b32 v15, 5, v0
    v_lshrrev_b32 v7, 1, v14
    v_and_b32 v7, 7, v7
    v_xor_b32 v7, v15, v7
    v_lshlrev_b32 v7, 4, v7
    s_lshl_b32 s29, s27, 14            ; kh*16384
    s_lshl_b32 s32, s26, 13            ; 64wm*128
    s_add_u32 s29, s29, s32
    v_lshlrev_b32 v8, 7, v14
    v_add3_u32 v144, v8, v7, s29
    s_lshl_b32 s29, s27, 13            ; kh*8192
    s_add_u32 s29, s29, 32768
    v_add3_u32 v148, v8, v7, s29
    """)
    for ks in range(1, 4):
        a(f"v_xor_b32 v{144+ks}, {32*ks}, v144")
        a(f"v_xor_b32 v{148+ks}, {32*ks}, v148")
    for b in range(1, 3):
        for i in range(8):
            a(f"v_add_u32 v{144+8*b+i}, {b*K2_STAGE}, v{144+i}")
    a("s_waitcnt lgkmcnt(0)")
    srd(a, 16, L * D * 2)
    srd(a, 20, L * D * 4)
    stamp(a, 0, 4, 1)
    for r in range(64, 128):
        a(f"v_mov_b32 v{r}, 0")

    sets = [(32, 36, 40, 44), (48, 52, 56, 60)]
    ACC = [[64, 80], [96, 112]]

    def stage(b, wait, dma):
        a("s_barrier")

        def rd(ks, s):
            if NOCOMP > 1:
                return
            A0, A1, B0, B1 = s
            va = 144 + 8 * b + ks
            vb = 148 + 8 * b + ks
            a(f"ds_read_b128 v[{A0}:{A0+3}], v{va}")
            a(f"ds_read_b128 v[{B0}:{B0+3}], v{vb}")
            a(f"ds_read_b128 v[{B1}:{B1+3}], v{vb} offset:4096")
            a(f"ds_read_b128 v[{A1}:{A1+3}], v{va} offset:4096")

        def mf(s):
            A0, A1, B0, B1 = s
            mfma(a, ACC[0][0], A0, B0)
            mfma(a, ACC[0][1], A0, B1)
            mfma(a, ACC[1][0], A1, B0)
            mfma(a, ACC[1][1], A1, B1)
        compute_stage(a, rd, mf, sets)

    stamp(a, 1, 4, 1)
    a("s_mov_b32 s35, 4")
    a.label("K2_LOOP")
    for b in range(3):
        stage(b, 12, True)
    a("s_sub_u32 s35, s35, 1")
    a("s_cmp_lg_u32 s35, 0")
    a("s_cbranch_scc1 K2_LOOP")
    stage(0, 12, True)
    stage(1, 12, True)
    stage(2, 12, False)
    a("""
    v_lshrrev_b32 v16, 4, v0
    v_and_b32 v17, 15, v0
    v_lshlrev_b32 v18, 11, v16
    v_lshl_add_u32 v18, v17, 3, v18
    s_lshl_b32 s29, s30, 18
    s_lshl_b32 s37, s28, 16
    s_add_u32 s29, s29, s37
    s_lshl_b32 s37, s31, 7
    s_add_u32 s29, s29, s37
    v_lshlrev_b32 v19, 3, v17
    v_add_u32 v19, s37, v19
    global_load_dwordx2 v[20:21], v19, s[24:25]
    """)
    for i in range(8):
        a(f"buffer_load_dwordx2 v[{128+2*i}:{129+2*i}], v18, s[16:19], s29 offen")
        if i < 7:
            a("s_add_u32 s29, s29, 8192")
    stage(0, 9, False)
    a("s_nop 15")
    a("s_nop 3")
    stamp(a, 2, 4, 1)
    a("s_barrier")
    a("""
    s_lshl_b32 s29, s27, 15
    s_lshl_b32 s37, s26, 14
    s_add_u32 s29, s29, s37
    v_lshlrev_b32 v1, 10, v15
    v_lshl_add_u32 v1, v14, 2, v1
    v_add_u32 v1, s29, v1
    """)
    for rb in range(2):
        for nb in range(2):
            for r in range(16):
                off = (32 * rb + (r & 3) + 8 * (r >> 2)) * 256 + nb * 128
                a(f"ds_write_b32 v1, v{ACC[rb][nb]+r} offset:{off}")
    a("""
    s_lshl_b32 s29, s28, 13
    v_lshlrev_b32 v2, 8, v16
    v_lshl_add_u32 v2, v17, 4, v2
    v_add_u32 v2, s29, v2
    v_lshlrev_b32 v3, 12, v16
    v_lshl_add_u32 v3, v17, 4, v3
    s_lshl_b32 s29, s30, 19
    s_lshl_b32 s37, s28, 17
    s_add_u32 s29, s29, s37
    s_lshl_b32 s37, s31, 8
    s_add_u32 s29, s29, s37
    s_waitcnt vmcnt(0) lgkmcnt(0)
    s_barrier
    v_lshlrev_b32 v22, 16, v20
    v_and_b32 v23, 0xffff0000, v20
    v_lshlrev_b32 v24, 16, v21
    v_and_b32 v25, 0xffff0000, v21
    """)
    for i in range(8):
        a(f"ds_read_b128 v[{64+8*i}:{67+8*i}], v2 offset:{i*1024}")
        a(f"ds_read_b128 v[{68+8*i}:{71+8*i}], v2 offset:{32768 + i*1024}")
    for i in range(8):
        xr = 128 + 2 * i
        A = 64 + 8 * i
        a(f"""
        v_lshlrev_b32 v26, 16, v{xr}
        v_and_b32 v27, 0xffff0000, v{xr}
        v_lshlrev_b32 v28, 16, v{xr+1}
        v_and_b32 v29, 0xffff0000, v{xr+1}
        v_mul_f32 v26, v26, v22
        v_mul_f32 v27, v27, v23
        v_mul_f32 v28, v28, v24
        v_mul_f32 v29, v29, v25
        v_cvt_pk_bf16_f32 v26, v26, v27
        v_cvt_pk_bf16_f32 v28, v28, v29
        v_and_b32 v27, 0xffff0000, v26
        v_lshlrev_b32 v26, 16, v26
        v_and_b32 v29, 0xffff0000, v28
        v_lshlrev_b32 v28, 16, v28
        s_waitcnt lgkmcnt({14-2*i})
        v_add_f32 v{A}, v{A}, v{A+4}
        v_add_f32 v{A+1}, v{A+1}, v{A+5}
        v_add_f32 v{A+2}, v{A+2}, v{A+6}
        v_add_f32 v{A+3}, v{A+3}, v{A+7}
        v_add_f32 v{A}, v{A}, v26
        v_add_f32 v{A+1}, v{A+1}, v27
        v_add_f32 v{A+2}, v{A+2}, v28
        v_add_f32 v{A+3}, v{A+3}, v29
        buffer_store_dwordx4 v[{A}:{A+3}], v3, s[20:23], s29 offen
        s_add_u32 s29, s29, 16384
        """)
    if STAMP:
        a("s_waitcnt vmcnt(0)")
    stamp(a, 3, 4, 1)
    a.label("K2_END")
    a("s_endpgm")


HEADER = """; S5 SSM (GEMM -> diagonal complex scan -> GEMM), generated by work/gen2.py (hand-designed schedule)
; @launch kernel=ssm_k1_kernel grid=(256,1,1) block=(512,1,1) lds={k1lds}
; @launch kernel=ssm_k2_kernel grid=(256,1,1) block=(512,1,1) lds={k2lds}
.amdgcn_target "amdgcn-amd-amdhsa--gfx950"
.text
"""

KD = """
.amdhsa_kernel {name}
  .amdhsa_next_free_vgpr {vgpr}
  .amdhsa_next_free_sgpr 64
  .amdhsa_accum_offset {vgpr}
  .amdhsa_group_segment_fixed_size 0
  .amdhsa_kernarg_size 96
  .amdhsa_user_sgpr_count 2
  .amdhsa_user_sgpr_kernarg_segment_ptr 1
  .amdhsa_system_sgpr_workgroup_id_x 1
  .amdhsa_float_denorm_mode_32 3
  .amdhsa_float_denorm_mode_16_64 3
.end_amdhsa_kernel
"""


def main():
    out = HEADER.format(k1lds=K1_LDS, k2lds=K2_LDS)
    a = Asm()
    a.lines.append(".globl ssm_k1_kernel\n.p2align 8\n.type ssm_k1_kernel,@function")
    gen_k1(a)
    a.lines.append(".globl ssm_k2_kernel\n.p2align 8\n.type ssm_k2_kernel,@function")
    gen_k2(a)
    out += a.text()
    out += '.section .rodata,"a"\n.p2align 6\n'
    out += KD.format(name="ssm_k1_kernel", vgpr=256 if STAMP else 208)
    out += ".p2align 6\n"
    out += KD.format(name="ssm_k2_kernel", vgpr=256 if STAMP else 168)
    path = sys.argv[1] if len(sys.argv) > 1 else "standalone__ssm_conv_s5__prompt.s"
    open(path, "w").write(out)
    print("wrote", path, len(out))


if __name__ == "__main__":
    main()
```

```python
import sys, os
NOCOMP = int(os.environ.get("NOCOMP", "0"))
NODMA = int(os.environ.get("NODMA", "0"))
STAMP = int(os.environ.get("STAMP", "0"))
PF = int(os.environ.get("PF", "0"))
WS_STAMP = 16 << 20


def stamp(a, idx, wsreg, kern):
    if not STAMP:
        return
    a(f"""
    s_memrealtime s[44:45]
    s_lshl_b32 s46, s2, 7
    s_add_u32 s46, s46, {WS_STAMP + idx*8} + {kern}*65536
    s_waitcnt lgkmcnt(0)
    v_mov_b32 v250, s44
    v_mov_b32 v251, s45
    v_mov_b32 v252, s46
    s_cmp_lg_u32 s28, 0
    s_cbranch_scc1 ST_{kern}_{idx}
    v_cmp_eq_u32 vcc, 0, v0
    s_and_saveexec_b64 s[46:47], vcc
    global_store_dwordx2 v252, v[250:251], s[{wsreg}:{wsreg+1}]
    s_mov_b64 exec, s[46:47]
    """)
    a.label(f"ST_{kern}_{idx}")
    a(f"""
    s_memtime s[44:45]
    s_lshl_b32 s46, s2, 7
    s_add_u32 s46, s46, {WS_STAMP + (8+idx)*8} + {kern}*65536
    s_waitcnt lgkmcnt(0)
    v_mov_b32 v250, s44
    v_mov_b32 v251, s45
    v_mov_b32 v252, s46
    s_cmp_lg_u32 s28, 0
    s_cbranch_scc1 SU_{kern}_{idx}
    v_cmp_eq_u32 vcc, 0, v0
    s_and_saveexec_b64 s[46:47], vcc
    global_store_dwordx2 v252, v[250:251], s[{wsreg}:{wsreg+1}]
    s_mov_b64 exec, s[46:47]
    """)
    a.label(f"SU_{kern}_{idx}")

L, D, P = 2048, 1024, 1024
WS_H = 0
WS_AGG = 8 << 20


class Asm:
    def __init__(self):
        self.lines = []

    def __call__(self, s=""):
        for ln in s.strip("\n").split("\n"):
            t = ln.strip()
            self.lines.append(("    " + t) if t else "")

    def label(self, s):
        self.lines.append(s + ":")

    def text(self):
        return "\n".join(self.lines) + "\n"


def srd(a, d, nbytes):
    a(f"s_and_b32 s{d+1}, s{d+1}, 0xffff")
    a(f"s_mov_b32 s{d+2}, {nbytes}")
    a(f"s_mov_b32 s{d+3}, 0x00020000")


def mfma(a, acc, A, B):
    if NOCOMP:
        return
    a(f"v_mfma_f32_32x32x16_bf16 v[{acc}:{acc+15}], v[{A}:{A+3}], v[{B}:{B+3}], v[{acc}:{acc+15}]")


LOG2E_HI = 0x3fb8aa3b
LOG2E_LO = 0x32a57060
LN2 = 0x3f317218


def exp_f32(a, dst, src, t0, t1, sA, sB):
    a(f"s_mov_b32 s{sA}, {LOG2E_HI:#x}")
    a(f"s_mov_b32 s{sB}, {LOG2E_LO:#x}")
    a(f"v_mul_f32 v{t0}, s{sA}, v{src}")
    a(f"v_fma_f32 v{t1}, v{src}, s{sA}, -v{t0}")
    a(f"v_fma_f32 v{t1}, v{src}, s{sB}, v{t1}")
    a(f"v_exp_f32 v{t0}, v{t0}")
    a(f"s_mov_b32 s{sA}, {LN2:#x}")
    a(f"v_mul_f32 v{t1}, s{sA}, v{t1}")
    a(f"s_nop 0")
    a(f"v_fma_f32 v{dst}, v{t0}, v{t1}, v{t0}")


def csq(a, dr, di, sr, si, t):
    a(f"v_mul_f32 v{t}, v{si}, v{si}")
    a(f"v_fma_f32 v{dr}, v{sr}, v{sr}, -v{t}")
    a(f"v_add_f32 v{t}, v{sr}, v{sr}")
    a(f"v_mul_f32 v{di}, v{t}, v{si}")


def cfma(a, dr, di, ar, ai, br, bi, cr, ci):
    a(f"v_fma_f32 v{dr}, v{ar}, v{br}, v{cr}")
    a(f"v_fma_f32 v{di}, v{ar}, v{bi}, v{ci}")
    a(f"v_fma_f32 v{dr}, -v{ai}, v{bi}, v{dr}")
    a(f"v_fma_f32 v{di}, v{ai}, v{br}, v{di}")


WG_DECODE = """
    s_and_b32 s26, s2, 7
    s_lshr_b32 s27, s2, 3
    s_and_b32 s30, s26, 3
    s_lshl_b32 s30, s30, 2
    s_and_b32 s31, s27, 3
    s_add_u32 s30, s30, s31            ; s30 = chunk
    s_lshr_b32 s31, s26, 2
    s_lshl_b32 s31, s31, 3
    s_lshr_b32 s27, s27, 2
    s_add_u32 s31, s31, s27
    v_lshrrev_b32 v1, 6, v0
    v_and_b32 v0, 63, v0               ; v0 = lane
    v_readfirstlane_b32 s28, v1        ; s28 = wave
    s_nop 3
"""


def compute_stage(a, rd, mf, sets):
    rd(0, sets[0])
    for ks in range(4):
        if ks < 3:
            rd(ks + 1, sets[(ks + 1) & 1])
            a("s_waitcnt lgkmcnt(4)")
        else:
            a("s_waitcnt lgkmcnt(0)")
        mf(sets[ks & 1])


K1_STAGE = 32768
K1_NB = 4
K1_AGG = K1_STAGE * K1_NB
K1_LDS = K1_AGG + 2048
K1_PB = 272


def k1_dma_stage(a, b):
    if NODMA:
        return
    base = b * K1_STAGE
    for j in range(4):
        a(f"s_add_u32 m0, s34, {base + j*1024}")
        a("s_nop 0")
        a(f"buffer_load_dwordx4 v{1+j}, s[4:7], s32 offen lds")
    for j in range(2):
        a(f"s_add_u32 m0, s38, {base + 16384 + j*1024}")
        a("s_nop 0")
        a(f"buffer_load_dwordx4 v{1+j}, s[8:11], s33 offen lds")
    for j in range(2):
        a(f"s_add_u32 m0, s38, {base + 24576 + j*1024}")
        a("s_nop 0")
        a(f"buffer_load_dwordx4 v{1+j}, s[12:15], s33 offen lds")
    a("s_add_u32 s32, s32, 128")
    a("s_add_u32 s33, s33, 128")


def gen_k1(a):
    a.label("ssm_k1_kernel")
    a("""
    s_cmp_ge_u32 s2, 256
    s_cbranch_scc1 K1_END
    s_load_dwordx2 s[4:5], s[0:1], 0
    s_load_dwordx2 s[8:9], s[0:1], 24
    s_load_dwordx2 s[12:13], s[0:1], 32
    s_load_dwordx2 s[16:17], s[0:1], 88
    s_load_dwordx2 s[18:19], s[0:1], 80
    s_load_dwordx2 s[20:21], s[0:1], 8
    s_load_dwordx2 s[22:23], s[0:1], 16
    s_load_dwordx2 s[24:25], s[0:1], 56
    """)
    a(WG_DECODE)
    a(f"""
    s_cmp_lt_u32 s28, 4
    s_cbranch_scc1 K1_MAIN
    s_sub_u32 s28, s28, 4
    v_lshrrev_b32 v1, 3, v0
    v_lshlrev_b32 v1, 11, v1
    v_lshrrev_b32 v2, 4, v0
    v_xor_b32 v2, v2, v0
    v_and_b32 v2, 7, v2
    v_lshlrev_b32 v2, 4, v2
    v_add_u32 v1, v1, v2
    v_xor_b32 v2, 64, v1
    v_add_u32 v2, 0x4000, v2
    v_add_u32 v3, 0x8000, v1
    v_add_u32 v4, 0x8000, v2
    s_lshl_b32 s32, s30, 18
    s_lshl_b32 s33, s28, 16
    s_add_u32 s32, s32, s33
    s_lshl_b32 s33, s31, 17
    s_lshl_b32 s34, s28, 15
    s_add_u32 s33, s33, s34
    s_lshl_b32 s34, s28, 12
    s_lshl_b32 s38, s28, 11
    s_waitcnt lgkmcnt(0)
    """)
    srd(a, 4, L * D * 2)
    srd(a, 8, P * D * 2)
    srd(a, 12, P * D * 2)
    for b in range(3):
        k1_dma_stage(a, b)
    a("s_mov_b32 s35, 3")
    a.label("K1_PLOOP")
    for b in range(4):
        a("s_waitcnt vmcnt(16)")
        a("s_barrier")
        k1_dma_stage(a, (b + 3) % 4)
    a("s_sub_u32 s35, s35, 1")
    a("s_cmp_lg_u32 s35, 0")
    a("s_cbranch_scc1 K1_PLOOP")
    a("s_waitcnt vmcnt(16)")
    a("s_barrier")
    k1_dma_stage(a, 3)
    a("s_waitcnt vmcnt(16)")
    a("s_barrier")
    a("s_waitcnt vmcnt(8)")
    a("s_barrier")
    a("s_waitcnt vmcnt(0)")
    a("s_barrier")
    a("s_endpgm")
    a.label("K1_MAIN")
    if STAMP:
        a("s_waitcnt lgkmcnt(0)")
    stamp(a, 0, 16, 0)
    a("""
    s_lshr_b32 s26, s28, 1             ; s26 = wr
    s_and_b32 s27, s28, 1              ; s27 = wc
    v_and_b32 v7, 31, v0               ; n / m
    v_lshrrev_b32 v8, 5, v0            ; hb
    v_lshrrev_b32 v9, 2, v7
    v_and_b32 v9, 1, v9
    v_lshlrev_b32 v9, 5, v9
    v_and_b32 v10, 3, v7
    v_add_u32 v9, v9, v10
    v_lshrrev_b32 v10, 3, v7
    v_lshlrev_b32 v10, 2, v10
    v_add_u32 v9, v9, v10
    s_lshl_b32 s29, s26, 6
    v_add_u32 v9, s29, v9              ; T0
    v_lshrrev_b32 v10, 1, v9
    v_and_b32 v10, 7, v10
    v_xor_b32 v10, v8, v10
    v_lshlrev_b32 v10, 4, v10
    v_lshl_add_u32 v192, v9, 7, v10
    s_lshl_b32 s29, s27, 5
    v_add_u32 v9, s29, v7
    v_lshrrev_b32 v10, 1, v9
    v_and_b32 v10, 7, v10
    v_xor_b32 v10, v8, v10
    v_lshlrev_b32 v10, 4, v10
    v_lshl_add_u32 v196, v9, 7, v10
    v_add_u32 v196, 0x4000, v196
    """)
    for ks in range(1, 4):
        a(f"v_xor_b32 v{192+ks}, {32*ks}, v192")
        a(f"v_xor_b32 v{196+ks}, {32*ks}, v196")
    for i in range(8):
        a(f"v_add_u32 v{200+i}, 0x10000, v{192+i}")
    a("""
    s_lshl_b32 s29, s31, 6
    s_lshl_b32 s32, s27, 5
    s_add_u32 s29, s29, s32
    v_add_u32 v9, s29, v7
    v_lshlrev_b32 v9, 1, v9
    s_waitcnt lgkmcnt(0)
    """)
    a(f"""
    global_load_ushort v10, v9, s[20:21]
    global_load_ushort v11, v9, s[22:23]
    global_load_ushort v12, v9, s[24:25]
    s_cmp_lg_u32 s28, 0
    s_cbranch_scc1 K1_NOCLR
    s_lshl_b32 s29, s31, 14
    s_lshl_b32 s32, s30, 10
    s_add_u32 s29, s29, s32
    s_add_u32 s29, s29, {WS_AGG}
    v_lshlrev_b32 v1, 4, v0
    v_add_u32 v1, s29, v1
    v_mov_b32 v32, 0
    v_mov_b32 v33, 0
    v_mov_b32 v34, 0
    v_mov_b32 v35, 0
    s_lshl_b32 s29, s31, 2
    v_mov_b32 v2, s29
    v_mov_b32 v3, 1
    global_store_dwordx4 v1, v[32:35], s[16:17] sc1
    s_waitcnt vmcnt(0)
    v_cmp_eq_u32 vcc, 0, v0
    s_and_saveexec_b64 s[36:37], vcc
    global_atomic_add v2, v3, s[18:19]
    s_mov_b64 exec, s[36:37]
    s_branch K1_CLRD
    """)
    a.label("K1_NOCLR")
    a("s_waitcnt vmcnt(0)")
    a.label("K1_CLRD")
    for r in range(64, 128):
        a(f"v_mov_b32 v{r}, 0")

    a(f"""
    v_lshlrev_b32 v10, 16, v10
    v_lshlrev_b32 v11, 16, v11
    v_lshlrev_b32 v12, 16, v12
    """)
    exp_f32(a, 13, 12, 14, 15, 36, 37)
    a("""
    v_cvt_pk_bf16_f32 v13, v13, v13
    v_lshlrev_b32 v13, 16, v13
    v_mul_f32 v14, v13, v10
    v_mul_f32 v15, v13, v11
    """)
    exp_f32(a, 16, 14, 17, 18, 36, 37)
    a("""
    v_mul_f32 v17, 0.15915494, v15
    v_fract_f32 v17, v17
    v_sin_f32 v18, v17
    v_cos_f32 v19, v17
    s_nop 0
    v_mul_f32 v20, v16, v19            ; Lr
    v_mul_f32 v21, v16, v18            ; Li
    v_sub_f32 v22, 0, v21              ; -Li
    v_add_f32 v13, -1.0, v20
    v_mul_f32 v14, v13, v10
    v_fma_f32 v14, v21, v11, v14
    v_mul_f32 v15, v21, v10
    v_fma_f32 v15, -v13, v11, v15
    v_mul_f32 v16, v10, v10
    v_fma_f32 v16, v11, v11, v16
    v_rcp_f32 v17, v16
    s_nop 0
    v_fma_f32 v18, -v16, v17, 1.0
    v_fma_f32 v17, v17, v18, v17
    v_mul_f32 v23, v14, v17
    v_mul_f32 v24, v15, v17
    v_mul_f32 v25, v23, v20
    v_fma_f32 v25, -v24, v21, v25
    v_mul_f32 v26, v23, v21
    v_fma_f32 v26, v24, v20, v26
    v_add_f32 v23, v23, v23
    v_add_f32 v24, v24, v24
    """)
    csq(a, 13, 14, 20, 21, 17)
    csq(a, 15, 16, 13, 14, 17)
    csq(a, 13, 14, 15, 16, 17)
    csq(a, 15, 16, 13, 14, 17)
    csq(a, 27, 28, 15, 16, 17)
    csq(a, 13, 14, 27, 28, 17)
    csq(a, 29, 30, 13, 14, 17)

    ACC = [[64, 80], [96, 112]]
    sets = [(32, 36, 40, 44), (48, 52, 56, 60)]

    def stage(b, wait, dma):
        a("s_barrier")

        def rd(ks, s):
            if NOCOMP > 1:
                return
            A0, A1, B0, B1 = s
            va = (192 if b < 2 else 200) + ks
            vb = (196 if b < 2 else 204) + ks
            base = (b & 1) * K1_STAGE
            a(f"ds_read_b128 v[{A0}:{A0+3}], v{va} offset:{base}")
            a(f"ds_read_b128 v[{B0}:{B0+3}], v{vb} offset:{base}")
            a(f"ds_read_b128 v[{B1}:{B1+3}], v{vb} offset:{base + 8192}")
            a(f"ds_read_b128 v[{A1}:{A1+3}], v{va} offset:{base + 2048}")

        def mf(s):
            A0, A1, B0, B1 = s
            mfma(a, ACC[0][0], A0, B0)
            mfma(a, ACC[0][1], A0, B1)
            mfma(a, ACC[1][0], A1, B0)
            mfma(a, ACC[1][1], A1, B1)
        compute_stage(a, rd, mf, sets)

    stamp(a, 1, 16, 0)
    a("s_mov_b32 s35, 4")
    a.label("K1_LOOP")
    for b in range(4):
        stage(b, 16, True)
    a("s_sub_u32 s35, s35, 1")
    a("s_cmp_lg_u32 s35, 0")
    a("s_cbranch_scc1 K1_LOOP")
    a("s_nop 15")
    a("s_nop 3")
    stamp(a, 2, 16, 0)

    def gr(t):
        return ACC[t // 16][0] + (t % 16)

    def gi(t):
        return ACC[t // 16][1] + (t % 16)

    for t in range(1, 32):
        a(f"v_fmac_f32 v{gr(t)}, v20, v{gr(t-1)}")
        a(f"v_fmac_f32 v{gi(t)}, v20, v{gi(t-1)}")
        a(f"v_fmac_f32 v{gr(t)}, v22, v{gi(t-1)}")
        a(f"v_fmac_f32 v{gi(t)}, v21, v{gr(t-1)}")

    a(f"""
    s_lshl_b32 s29, s27, 5
    v_add_u32 v9, s29, v7
    v_lshlrev_b32 v10, 3, v9
    v_add_u32 v10, {K1_AGG}, v10
    s_lshl_b32 s29, s26, 1
    v_add_u32 v11, s29, v8
    v_lshlrev_b32 v11, 9, v11
    v_add_u32 v11, v11, v10
    ds_write2_b32 v11, v{gr(31)}, v{gi(31)} offset0:0 offset1:1
    s_lshl_b32 s29, s31, 2
    v_mov_b32 v34, s29
    s_mov_b32 s35, 0x40000
    """)
    a.label("K1_POLL")
    a("""
    global_load_dword v35, v34, s[18:19] sc1
    s_waitcnt vmcnt(0)
    v_readfirstlane_b32 s29, v35
    s_nop 3
    s_cmp_ge_u32 s29, 16
    s_cbranch_scc1 K1_POLL_DONE
    s_sub_u32 s35, s35, 1
    s_cmp_eq_u32 s35, 0
    s_cbranch_scc1 K1_POLL_DONE
    s_sleep 2
    s_branch K1_POLL
    """)
    a.label("K1_POLL_DONE")
    stamp(a, 3, 16, 0)
    a(f"""
    s_waitcnt lgkmcnt(0)
    s_barrier
    ds_read_b64 v[12:13], v10
    ds_read_b64 v[14:15], v10 offset:512
    ds_read_b64 v[16:17], v10 offset:1024
    ds_read_b64 v[18:19], v10 offset:1536
    s_lshl_b32 s29, s31, 14
    s_add_u32 s29, s29, {WS_AGG}
    v_lshlrev_b32 v9, 4, v9
    v_add_u32 v9, s29, v9
    s_lshl_b32 s29, s30, 10
    v_add_u32 v11, s29, v9
    s_waitcnt lgkmcnt(0)
    """)
    cfma(a, 36, 37, 12, 13, 27, 28, 14, 15)
    cfma(a, 38, 39, 36, 37, 27, 28, 16, 17)
    cfma(a, 32, 34, 38, 39, 27, 28, 18, 19)
    a("""
    v_mov_b32 v33, -1
    v_mov_b32 v35, -1
    s_cmp_lg_u32 s26, 0
    s_cbranch_scc1 K1_NOPUB
    v_cmp_gt_u32 vcc, 32, v0
    s_and_saveexec_b64 s[36:37], vcc
    global_store_dwordx4 v11, v[32:35], s[16:17] sc1
    s_mov_b64 exec, s[36:37]
    """)
    a.label("K1_NOPUB")
    a("""
    v_mov_b32 v36, 0
    v_mov_b32 v37, 0
    s_cmp_eq_u32 s30, 0
    s_cbranch_scc1 K1_CARRY_DONE
    v_add_u32 v40, 0x1000, v9
    v_add_u32 v41, 0x2000, v9
    v_add_u32 v42, 0x3000, v9
    s_mov_b32 s35, 0x40000
    """)
    EB = 128
    a.label("K1_GPOLL")
    for cc in range(15):
        if cc > 0:
            a(f"s_cmp_le_u32 s30, {cc}")
            a("s_cbranch_scc1 K1_GP_ISSUED")
        vb = [9, 40, 41, 42][cc // 4]
        a(f"global_load_dwordx4 v[{EB+4*cc}:{EB+4*cc+3}], v{vb}, s[16:17] offset:{(cc%4)*1024} sc1")
    a.label("K1_GP_ISSUED")
    a("s_waitcnt vmcnt(0)")
    a("v_mov_b32 v38, -1")
    for cc in range(15):
        if cc > 0:
            a(f"s_cmp_le_u32 s30, {cc}")
            a("s_cbranch_scc1 K1_GP_CHECKED")
        a(f"v_and_b32 v38, v38, v{EB+4*cc+1}")
        a(f"v_and_b32 v38, v38, v{EB+4*cc+3}")
    a.label("K1_GP_CHECKED")
    a("""
    v_cmp_ne_u32 vcc, -1, v38
    s_cbranch_vccz K1_GP_DONE
    s_sub_u32 s35, s35, 1
    s_cmp_eq_u32 s35, 0
    s_cbranch_scc1 K1_GP_DONE
    s_sleep 1
    s_branch K1_GPOLL
    """)
    a.label("K1_GP_DONE")
    a(f"v_mov_b32 v36, v{EB}")
    a(f"v_mov_b32 v37, v{EB+2}")
    for cc in range(1, 15):
        a(f"s_cmp_le_u32 s30, {cc}")
        a("s_cbranch_scc1 K1_CARRY_DONE")
        cfma(a, 38, 39, 36, 37, 29, 30, EB + 4 * cc, EB + 4 * cc + 2)
        a("v_mov_b32 v36, v38")
        a("v_mov_b32 v37, v39")
    a.label("K1_CARRY_DONE")
    stamp(a, 4, 16, 0)
    cfma(a, 38, 39, 36, 37, 27, 28, 12, 13)
    cfma(a, 40, 41, 38, 39, 27, 28, 14, 15)
    cfma(a, 42, 43, 40, 41, 27, 28, 16, 17)
    a("""
    v_cmp_lt_u32 vcc, 31, v0
    s_cmp_lg_u32 s26, 0
    s_cbranch_scc1 K1_SEL_HI
    v_cndmask_b32 v44, v36, v38, vcc
    v_cndmask_b32 v45, v37, v39, vcc
    s_branch K1_SEL_DONE
    """)
    a.label("K1_SEL_HI")
    a("""
    s_nop 0
    v_cndmask_b32 v44, v40, v42, vcc
    v_cndmask_b32 v45, v41, v43, vcc
    """)
    a.label("K1_SEL_DONE")
    a("""
    v_mul_f32 v46, v25, v44
    v_fma_f32 v46, -v26, v45, v46
    v_mul_f32 v47, v25, v45
    v_fma_f32 v47, v26, v44, v47
    v_add_f32 v46, v46, v46
    v_mul_f32 v47, -2.0, v47
    """)
    W = [(46, 47), (48, 49)]
    cur = 0
    for j in range(16):
        for h in range(2):
            t = 2 * j + h
            wr_, wi_ = W[cur]
            o_re, o_im = 50 + 2 * h, 51 + 2 * h
            a(f"v_fma_f32 v{o_re}, v23, v{gr(t)}, v{wr_}")
            a(f"v_fma_f32 v{o_im}, -v23, v{gi(t)}, v{wi_}")
            a(f"v_fma_f32 v{o_re}, -v24, v{gi(t)}, v{o_re}")
            a(f"v_fma_f32 v{o_im}, -v24, v{gr(t)}, v{o_im}")
            if t < 31:
                nr, ni = W[1 - cur]
                a(f"v_mul_f32 v{nr}, v20, v{wr_}")
                a(f"v_mul_f32 v{ni}, v20, v{wi_}")
                a(f"v_fmac_f32 v{nr}, v21, v{wi_}")
                a(f"v_fmac_f32 v{ni}, v22, v{wr_}")
                cur = 1 - cur
        a(f"v_cvt_pk_bf16_f32 v{64+j}, v50, v52")
        a(f"v_cvt_pk_bf16_f32 v{80+j}, v51, v53")
    PB = K1_PB
    a(f"""
    s_lshl_b32 s29, s27, 5
    v_add_u32 v9, s29, v7
    v_mul_u32_u24 v9, {PB}, v9
    s_lshl_b32 s29, s26, 7
    v_lshlrev_b32 v10, 6, v8
    v_add3_u32 v9, v9, v10, s29
    """)
    for i in range(4):
        a(f"ds_write_b128 v9, v[{64+4*i}:{67+4*i}] offset:{16*i}")
    for i in range(4):
        a(f"ds_write_b128 v9, v[{80+4*i}:{83+4*i}] offset:{64*PB + 16*i}")
    a(f"""
    v_lshrrev_b32 v10, 4, v0
    v_lshlrev_b32 v10, 3, v10
    v_lshrrev_b32 v11, 2, v0
    v_and_b32 v11, 3, v11
    v_add_u32 v10, v10, v11
    v_mul_u32_u24 v10, {PB}, v10
    v_and_b32 v11, 3, v0
    v_lshlrev_b32 v11, 3, v11
    s_lshl_b32 s29, s28, 6
    v_add3_u32 v10, v10, v11, s29
    v_and_b32 v11, 15, v0
    v_lshlrev_b32 v11, 12, v11
    v_lshrrev_b32 v12, 4, v0
    v_lshlrev_b32 v12, 4, v12
    v_add_u32 v11, v11, v12
    v_add_u32 v12, 0x10000, v11
    s_lshl_b32 s29, s30, 19
    s_lshl_b32 s35, s28, 17
    s_add_u32 s29, s29, s35
    s_lshl_b32 s35, s31, 7
    s_add_u32 s29, s29, s35
    s_mov_b32 s40, s16
    s_and_b32 s41, s17, 0xffff
    s_mov_b32 s42, {L*2048*2}
    s_mov_b32 s43, 0x00020000
    s_waitcnt lgkmcnt(0)
    s_barrier
    """)
    idx = 0
    regs = []
    for j in range(2):
        for im in range(2):
            for q in range(2):
                r0 = 64 + 4 * idx
                off = (64 * im + 32 * q) * PB + 32 * j
                a(f"ds_read_b64_tr_b16 v[{r0}:{r0+1}], v10 offset:{off}")
                a(f"ds_read_b64_tr_b16 v[{r0+2}:{r0+3}], v10 offset:{off + 4*PB}")
                regs.append((r0, j, im, q))
                idx += 1
    for n_, (r0, j, im, q) in enumerate(regs):
        a(f"s_waitcnt lgkmcnt({2*(7-n_)})")
        va = 11 if j == 0 else 12
        a(f"buffer_store_dwordx4 v[{r0}:{r0+3}], v{va}, s[40:43], s29 offen offset:{im*2048 + q*64}")
    if STAMP:
        a("s_waitcnt vmcnt(0)")
    stamp(a, 5, 16, 0)
    a.label("K1_END")
    a("s_endpgm")


K2_STAGE = 49152
K2_NB = 3
K2_LDS = K2_STAGE * K2_NB


def k2_dma_stage(a, b):
    if NODMA:
        return
    base = b * K2_STAGE
    for j in range(4):
        a(f"s_add_u32 m0, s34, {base + j*1024}")
        a("s_nop 0")
        a(f"buffer_load_dwordx4 v{1+j}, s[4:7], s32 offen lds")
    for j in range(2):
        a(f"s_add_u32 m0, s38, {base + 32768 + j*1024}")
        a("s_nop 0")
        a(f"buffer_load_dwordx4 v{5+j}, s[8:11], s33 offen lds")
    for j in range(4):
        a(f"s_add_u32 m0, s34, {base + 16384 + j*1024}")
        a("s_nop 0")
        a(f"buffer_load_dwordx4 v{1+j}, s[4:7], s36 offen lds")
    for j in range(2):
        a(f"s_add_u32 m0, s38, {base + 40960 + j*1024}")
        a("s_nop 0")
        a(f"buffer_load_dwordx4 v{5+j}, s[12:15], s33 offen lds")
    a("s_add_u32 s32, s32, 128")
    a("s_add_u32 s36, s36, 128")
    a("s_add_u32 s33, s33, 128")


def gen_k2(a):
    a.label("ssm_k2_kernel")
    a("""
    s_cmp_ge_u32 s2, 256
    s_cbranch_scc1 K2_END
    s_load_dwordx2 s[4:5], s[0:1], 88     ; ws (h')
    s_load_dwordx2 s[8:9], s[0:1], 40     ; C_re
    s_load_dwordx2 s[12:13], s[0:1], 48   ; C_im
    s_load_dwordx2 s[16:17], s[0:1], 0    ; x
    s_load_dwordx2 s[20:21], s[0:1], 72   ; out
    s_load_dwordx2 s[24:25], s[0:1], 64   ; Dskip
    """)
    a(WG_DECODE)
    a("""
    s_cmp_lt_u32 s28, 4
    s_cbranch_scc1 K2_MAIN
    s_sub_u32 s28, s28, 4
    v_lshrrev_b32 v7, 4, v0
    v_xor_b32 v7, v7, v0
    v_and_b32 v7, 7, v7
    v_lshlrev_b32 v7, 4, v7
    v_lshrrev_b32 v8, 3, v0
    v_lshl_add_u32 v1, v8, 12, v7
    v_xor_b32 v2, 64, v1
    v_add_u32 v2, 0x8000, v2
    v_add_u32 v3, 0x10000, v1
    v_add_u32 v4, 0x10000, v2
    v_lshl_add_u32 v5, v8, 11, v7
    v_xor_b32 v6, 64, v5
    v_add_u32 v6, 0x4000, v6
    s_lshl_b32 s32, s30, 19
    s_lshl_b32 s33, s28, 17
    s_add_u32 s32, s32, s33
    s_add_u32 s36, s32, 2048
    s_lshl_b32 s33, s31, 17
    s_lshl_b32 s34, s28, 15
    s_add_u32 s33, s33, s34
    s_lshl_b32 s34, s28, 12
    s_lshl_b32 s38, s28, 11
    s_waitcnt lgkmcnt(0)
    """)
    srd(a, 4, L * 2048 * 2)
    srd(a, 8, D * P * 2)
    srd(a, 12, D * P * 2)
    for b in range(2):
        k2_dma_stage(a, b)
    a("s_mov_b32 s35, 4")
    a.label("K2_PLOOP")
    for b in range(3):
        a("s_waitcnt vmcnt(12)")
        a("s_barrier")
        k2_dma_stage(a, (b + 2) % 3)
    a("s_sub_u32 s35, s35, 1")
    a("s_cmp_lg_u32 s35, 0")
    a("s_cbranch_scc1 K2_PLOOP")
    for b in range(2):
        a("s_waitcnt vmcnt(12)")
        a("s_barrier")
        k2_dma_stage(a, (b + 2) % 3)
    a("s_waitcnt vmcnt(12)")
    a("s_barrier")
    a("s_waitcnt vmcnt(0)")
    a("s_barrier")
    a("s_endpgm")
    a.label("K2_MAIN")
    if PF:
        a("""
    s_lshr_b32 s29, s2, 3
    s_and_b32 s32, s29, 7
    s_lshl_b32 s32, s32, 6
    v_add_u32 v1, s32, v0
    s_lshr_b32 s33, s29, 3
    s_and_b32 s34, s2, 3
    s_lshl_b32 s34, s34, 9
    s_bfe_u32 s35, s2, 0x10002
    s_lshl_b32 s35, s35, 9
    s_lshl_b32 s36, s28, 7
    s_waitcnt lgkmcnt(0)
    s_cmp_ge_u32 s33, 2
    s_cbranch_scc1 K2_PF_C
    v_add_u32 v1, s34, v1
    v_lshlrev_b32 v1, 12, v1
    s_lshl_b32 s33, s33, 11
    s_add_u32 s33, s33, s36
    v_add_u32 v1, s33, v1
    """)
        for i in range(4):
            a(f"global_load_dword v{240+i}, v1, s[4:5] offset:{i*512}")
        a("s_branch K2_PF_DONE")
        a.label("K2_PF_C")
        a("""
    v_add_u32 v1, s35, v1
    v_lshlrev_b32 v1, 11, v1
    v_add_u32 v1, s36, v1
    s_cmp_eq_u32 s33, 3
    s_cbranch_scc1 K2_PF_CI
    """)
        for i in range(4):
            a(f"global_load_dword v{240+i}, v1, s[8:9] offset:{i*512}")
        a("s_branch K2_PF_DONE")
        a.label("K2_PF_CI")
        for i in range(4):
            a(f"global_load_dword v{240+i}, v1, s[12:13] offset:{i*512}")
        a.label("K2_PF_DONE")
    a("""
    s_and_b32 s26, s28, 1              ; wm
    s_lshr_b32 s27, s28, 1             ; kh
    v_and_b32 v14, 31, v0
    v_lshrrev_b32 v15, 5, v0
    v_lshrrev_b32 v7, 1, v14
    v_and_b32 v7, 7, v7
    v_xor_b32 v7, v15, v7
    v_lshlrev_b32 v7, 4, v7
    s_lshl_b32 s29, s27, 14            ; kh*16384
    s_lshl_b32 s32, s26, 13            ; 64wm*128
    s_add_u32 s29, s29, s32
    v_lshlrev_b32 v8, 7, v14
    v_add3_u32 v144, v8, v7, s29
    s_lshl_b32 s29, s27, 13            ; kh*8192
    s_add_u32 s29, s29, 32768
    v_add3_u32 v148, v8, v7, s29
    """)
    for ks in range(1, 4):
        a(f"v_xor_b32 v{144+ks}, {32*ks}, v144")
        a(f"v_xor_b32 v{148+ks}, {32*ks}, v148")
    for b in range(1, 3):
        for i in range(8):
            a(f"v_add_u32 v{144+8*b+i}, {b*K2_STAGE}, v{144+i}")
    a("s_waitcnt lgkmcnt(0)")
    srd(a, 16, L * D * 2)
    srd(a, 20, L * D * 4)
    stamp(a, 0, 4, 1)
    for r in range(64, 128):
        a(f"v_mov_b32 v{r}, 0")

    sets = [(32, 36, 40, 44), (48, 52, 56, 60)]
    ACC = [[64, 80], [96, 112]]

    def stage(b, wait, dma):
        a("s_barrier")

        def rd(ks, s):
            if NOCOMP > 1:
                return
            A0, A1, B0, B1 = s
            va = 144 + 8 * b + ks
            vb = 148 + 8 * b + ks
            a(f"ds_read_b128 v[{A0}:{A0+3}], v{va}")
            a(f"ds_read_b128 v[{B0}:{B0+3}], v{vb}")
            a(f"ds_read_b128 v[{B1}:{B1+3}], v{vb} offset:4096")
            a(f"ds_read_b128 v[{A1}:{A1+3}], v{va} offset:4096")

        def mf(s):
            A0, A1, B0, B1 = s
            mfma(a, ACC[0][0], A0, B0)
            mfma(a, ACC[0][1], A0, B1)
            mfma(a, ACC[1][0], A1, B0)
            mfma(a, ACC[1][1], A1, B1)
        compute_stage(a, rd, mf, sets)

    stamp(a, 1, 4, 1)
    a("s_mov_b32 s35, 4")
    a.label("K2_LOOP")
    for b in range(3):
        stage(b, 12, True)
    a("s_sub_u32 s35, s35, 1")
    a("s_cmp_lg_u32 s35, 0")
    a("s_cbranch_scc1 K2_LOOP")
    stage(0, 12, True)
    stage(1, 12, True)
    stage(2, 12, False)
    a("""
    v_lshrrev_b32 v16, 4, v0
    v_and_b32 v17, 15, v0
    v_lshlrev_b32 v18, 11, v16
    v_lshl_add_u32 v18, v17, 3, v18
    s_lshl_b32 s29, s30, 18
    s_lshl_b32 s37, s28, 16
    s_add_u32 s29, s29, s37
    s_lshl_b32 s37, s31, 7
    s_add_u32 s29, s29, s37
    v_lshlrev_b32 v19, 3, v17
    v_add_u32 v19, s37, v19
    global_load_dwordx2 v[20:21], v19, s[24:25]
    """)
    for i in range(8):
        a(f"buffer_load_dwordx2 v[{128+2*i}:{129+2*i}], v18, s[16:19], s29 offen")
        if i < 7:
            a("s_add_u32 s29, s29, 8192")
    stage(0, 9, False)
    a("s_nop 15")
    a("s_nop 3")
    stamp(a, 2, 4, 1)
    a("s_barrier")
    a("""
    s_lshl_b32 s29, s27, 15
    s_lshl_b32 s37, s26, 14
    s_add_u32 s29, s29, s37
    v_lshlrev_b32 v1, 10, v15
    v_lshl_add_u32 v1, v14, 2, v1
    v_add_u32 v1, s29, v1
    """)
    for rb in range(2):
        for nb in range(2):
            for r in range(16):
                off = (32 * rb + (r & 3) + 8 * (r >> 2)) * 256 + nb * 128
                a(f"ds_write_b32 v1, v{ACC[rb][nb]+r} offset:{off}")
    a("""
    s_lshl_b32 s29, s28, 13
    v_lshlrev_b32 v2, 8, v16
    v_lshl_add_u32 v2, v17, 4, v2
    v_add_u32 v2, s29, v2
    v_lshlrev_b32 v3, 12, v16
    v_lshl_add_u32 v3, v17, 4, v3
    s_lshl_b32 s29, s30, 19
    s_lshl_b32 s37, s28, 17
    s_add_u32 s29, s29, s37
    s_lshl_b32 s37, s31, 8
    s_add_u32 s29, s29, s37
    s_waitcnt vmcnt(0) lgkmcnt(0)
    s_barrier
    v_lshlrev_b32 v22, 16, v20
    v_and_b32 v23, 0xffff0000, v20
    v_lshlrev_b32 v24, 16, v21
    v_and_b32 v25, 0xffff0000, v21
    """)
    for i in range(8):
        a(f"ds_read_b128 v[{64+8*i}:{67+8*i}], v2 offset:{i*1024}")
        a(f"ds_read_b128 v[{68+8*i}:{71+8*i}], v2 offset:{32768 + i*1024}")
    for i in range(8):
        xr = 128 + 2 * i
        A = 64 + 8 * i
        a(f"""
        v_lshlrev_b32 v26, 16, v{xr}
        v_and_b32 v27, 0xffff0000, v{xr}
        v_lshlrev_b32 v28, 16, v{xr+1}
        v_and_b32 v29, 0xffff0000, v{xr+1}
        v_mul_f32 v26, v26, v22
        v_mul_f32 v27, v27, v23
        v_mul_f32 v28, v28, v24
        v_mul_f32 v29, v29, v25
        v_cvt_pk_bf16_f32 v26, v26, v27
        v_cvt_pk_bf16_f32 v28, v28, v29
        v_and_b32 v27, 0xffff0000, v26
        v_lshlrev_b32 v26, 16, v26
        v_and_b32 v29, 0xffff0000, v28
        v_lshlrev_b32 v28, 16, v28
        s_waitcnt lgkmcnt({14-2*i})
        v_add_f32 v{A}, v{A}, v{A+4}
        v_add_f32 v{A+1}, v{A+1}, v{A+5}
        v_add_f32 v{A+2}, v{A+2}, v{A+6}
        v_add_f32 v{A+3}, v{A+3}, v{A+7}
        v_add_f32 v{A}, v{A}, v26
        v_add_f32 v{A+1}, v{A+1}, v27
        v_add_f32 v{A+2}, v{A+2}, v28
        v_add_f32 v{A+3}, v{A+3}, v29
        buffer_store_dwordx4 v[{A}:{A+3}], v3, s[20:23], s29 offen
        s_add_u32 s29, s29, 16384
        """)
    if STAMP:
        a("s_waitcnt vmcnt(0)")
    stamp(a, 3, 4, 1)
    a.label("K2_END")
    a("s_endpgm")


HEADER = """; S5 SSM (GEMM -> diagonal complex scan -> GEMM), generated by work/gen2.py (hand-designed schedule)
; @launch kernel=ssm_k1_kernel grid=(256,1,1) block=(512,1,1) lds={k1lds}
; @launch kernel=ssm_k2_kernel grid=(256,1,1) block=(512,1,1) lds={k2lds}
.amdgcn_target "amdgcn-amd-amdhsa--gfx950"
.text
"""

KD = """
.amdhsa_kernel {name}
  .amdhsa_next_free_vgpr {vgpr}
  .amdhsa_next_free_sgpr 64
  .amdhsa_accum_offset {vgpr}
  .amdhsa_group_segment_fixed_size 0
  .amdhsa_kernarg_size 96
  .amdhsa_user_sgpr_count 2
  .amdhsa_user_sgpr_kernarg_segment_ptr 1
  .amdhsa_system_sgpr_workgroup_id_x 1
  .amdhsa_float_denorm_mode_32 3
  .amdhsa_float_denorm_mode_16_64 3
.end_amdhsa_kernel
"""


def main():
    out = HEADER.format(k1lds=K1_LDS, k2lds=K2_LDS)
    a = Asm()
    a.lines.append(".globl ssm_k1_kernel\n.p2align 8\n.type ssm_k1_kernel,@function")
    gen_k1(a)
    a.lines.append(".globl ssm_k2_kernel\n.p2align 8\n.type ssm_k2_kernel,@function")
    gen_k2(a)
    out += a.text()
    out += '.section .rodata,"a"\n.p2align 6\n'
    out += KD.format(name="ssm_k1_kernel", vgpr=256 if STAMP else 208)
    out += ".p2align 6\n"
    out += KD.format(name="ssm_k2_kernel", vgpr=256 if (STAMP or PF) else 168)
    path = sys.argv[1] if len(sys.argv) > 1 else "standalone__ssm_conv_s5__prompt.s"
    open(path, "w").write(out)
    print("wrote", path, len(out))


if __name__ == "__main__":
    main()
```

```python
import sys, os
NOCOMP = int(os.environ.get("NOCOMP", "0"))
NODMA = int(os.environ.get("NODMA", "0"))
STAMP = int(os.environ.get("STAMP", "0"))
PF = int(os.environ.get("PF", "0"))
PF1 = int(os.environ.get("PF1", "0"))
PFC = int(os.environ.get("PFC", "0"))
WS_STAMP = 16 << 20


def stamp(a, idx, wsreg, kern):
    if not STAMP:
        return
    a(f"""
    s_memrealtime s[44:45]
    s_lshl_b32 s46, s2, 7
    s_add_u32 s46, s46, {WS_STAMP + idx*8} + {kern}*65536
    s_waitcnt lgkmcnt(0)
    v_mov_b32 v250, s44
    v_mov_b32 v251, s45
    v_mov_b32 v252, s46
    s_cmp_lg_u32 s28, 0
    s_cbranch_scc1 ST_{kern}_{idx}
    v_cmp_eq_u32 vcc, 0, v0
    s_and_saveexec_b64 s[46:47], vcc
    global_store_dwordx2 v252, v[250:251], s[{wsreg}:{wsreg+1}]
    s_mov_b64 exec, s[46:47]
    """)
    a.label(f"ST_{kern}_{idx}")
    a(f"""
    s_memtime s[44:45]
    s_lshl_b32 s46, s2, 7
    s_add_u32 s46, s46, {WS_STAMP + (8+idx)*8} + {kern}*65536
    s_waitcnt lgkmcnt(0)
    v_mov_b32 v250, s44
    v_mov_b32 v251, s45
    v_mov_b32 v252, s46
    s_cmp_lg_u32 s28, 0
    s_cbranch_scc1 SU_{kern}_{idx}
    v_cmp_eq_u32 vcc, 0, v0
    s_and_saveexec_b64 s[46:47], vcc
    global_store_dwordx2 v252, v[250:251], s[{wsreg}:{wsreg+1}]
    s_mov_b64 exec, s[46:47]
    """)
    a.label(f"SU_{kern}_{idx}")

L, D, P = 2048, 1024, 1024
WS_H = 0
WS_AGG = 8 << 20


class Asm:
    def __init__(self):
        self.lines = []

    def __call__(self, s=""):
        for ln in s.strip("\n").split("\n"):
            t = ln.strip()
            self.lines.append(("    " + t) if t else "")

    def label(self, s):
        self.lines.append(s + ":")

    def text(self):
        return "\n".join(self.lines) + "\n"


def srd(a, d, nbytes):
    a(f"s_and_b32 s{d+1}, s{d+1}, 0xffff")
    a(f"s_mov_b32 s{d+2}, {nbytes}")
    a(f"s_mov_b32 s{d+3}, 0x00020000")


def mfma(a, acc, A, B):
    if NOCOMP:
        return
    a(f"v_mfma_f32_32x32x16_bf16 v[{acc}:{acc+15}], v[{A}:{A+3}], v[{B}:{B+3}], v[{acc}:{acc+15}]")


LOG2E_HI = 0x3fb8aa3b
LOG2E_LO = 0x32a57060
LN2 = 0x3f317218


def exp_f32(a, dst, src, t0, t1, sA, sB):
    a(f"s_mov_b32 s{sA}, {LOG2E_HI:#x}")
    a(f"s_mov_b32 s{sB}, {LOG2E_LO:#x}")
    a(f"v_mul_f32 v{t0}, s{sA}, v{src}")
    a(f"v_fma_f32 v{t1}, v{src}, s{sA}, -v{t0}")
    a(f"v_fma_f32 v{t1}, v{src}, s{sB}, v{t1}")
    a(f"v_exp_f32 v{t0}, v{t0}")
    a(f"s_mov_b32 s{sA}, {LN2:#x}")
    a(f"v_mul_f32 v{t1}, s{sA}, v{t1}")
    a(f"s_nop 0")
    a(f"v_fma_f32 v{dst}, v{t0}, v{t1}, v{t0}")


def csq(a, dr, di, sr, si, t):
    a(f"v_mul_f32 v{t}, v{si}, v{si}")
    a(f"v_fma_f32 v{dr}, v{sr}, v{sr}, -v{t}")
    a(f"v_add_f32 v{t}, v{sr}, v{sr}")
    a(f"v_mul_f32 v{di}, v{t}, v{si}")


def cfma(a, dr, di, ar, ai, br, bi, cr, ci):
    a(f"v_fma_f32 v{dr}, v{ar}, v{br}, v{cr}")
    a(f"v_fma_f32 v{di}, v{ar}, v{bi}, v{ci}")
    a(f"v_fma_f32 v{dr}, -v{ai}, v{bi}, v{dr}")
    a(f"v_fma_f32 v{di}, v{ai}, v{br}, v{di}")


WG_DECODE = """
    s_and_b32 s26, s2, 7
    s_lshr_b32 s27, s2, 3
    s_and_b32 s30, s26, 3
    s_lshl_b32 s30, s30, 2
    s_and_b32 s31, s27, 3
    s_add_u32 s30, s30, s31            ; s30 = chunk
    s_lshr_b32 s31, s26, 2
    s_lshl_b32 s31, s31, 3
    s_lshr_b32 s27, s27, 2
    s_add_u32 s31, s31, s27
    v_lshrrev_b32 v1, 6, v0
    v_and_b32 v0, 63, v0               ; v0 = lane
    v_readfirstlane_b32 s28, v1        ; s28 = wave
    s_nop 3
"""


def compute_stage(a, rd, mf, sets):
    rd(0, sets[0])
    for ks in range(4):
        if ks < 3:
            rd(ks + 1, sets[(ks + 1) & 1])
            a("s_waitcnt lgkmcnt(4)")
        else:
            a("s_waitcnt lgkmcnt(0)")
        mf(sets[ks & 1])


K1_STAGE = 32768
K1_NB = 4
K1_AGG = K1_STAGE * K1_NB
K1_LDS = K1_AGG + 2048
K1_PB = 272


def k1_dma_stage(a, b):
    if NODMA:
        return
    base = b * K1_STAGE
    for j in range(4):
        a(f"s_add_u32 m0, s34, {base + j*1024}")
        a("s_nop 0")
        a(f"buffer_load_dwordx4 v{1+j}, s[4:7], s32 offen lds")
    for j in range(2):
        a(f"s_add_u32 m0, s38, {base + 16384 + j*1024}")
        a("s_nop 0")
        a(f"buffer_load_dwordx4 v{1+j}, s[8:11], s33 offen lds")
    for j in range(2):
        a(f"s_add_u32 m0, s38, {base + 24576 + j*1024}")
        a("s_nop 0")
        a(f"buffer_load_dwordx4 v{1+j}, s[12:15], s33 offen lds")
    a("s_add_u32 s32, s32, 128")
    a("s_add_u32 s33, s33, 128")


def gen_k1(a):
    a.label("ssm_k1_kernel")
    a("""
    s_cmp_ge_u32 s2, 256
    s_cbranch_scc1 K1_END
    s_load_dwordx2 s[4:5], s[0:1], 0
    s_load_dwordx2 s[8:9], s[0:1], 24
    s_load_dwordx2 s[12:13], s[0:1], 32
    s_load_dwordx2 s[16:17], s[0:1], 88
    s_load_dwordx2 s[18:19], s[0:1], 80
    s_load_dwordx2 s[20:21], s[0:1], 8
    s_load_dwordx2 s[22:23], s[0:1], 16
    s_load_dwordx2 s[24:25], s[0:1], 56
    """)
    a(WG_DECODE)
    a(f"""
    s_cmp_lt_u32 s28, 4
    s_cbranch_scc1 K1_MAIN
    s_sub_u32 s28, s28, 4
    v_lshrrev_b32 v1, 3, v0
    v_lshlrev_b32 v1, 11, v1
    v_lshrrev_b32 v2, 4, v0
    v_xor_b32 v2, v2, v0
    v_and_b32 v2, 7, v2
    v_lshlrev_b32 v2, 4, v2
    v_add_u32 v1, v1, v2
    v_xor_b32 v2, 64, v1
    v_add_u32 v2, 0x4000, v2
    v_add_u32 v3, 0x8000, v1
    v_add_u32 v4, 0x8000, v2
    s_lshl_b32 s32, s30, 18
    s_lshl_b32 s33, s28, 16
    s_add_u32 s32, s32, s33
    s_lshl_b32 s33, s31, 17
    s_lshl_b32 s34, s28, 15
    s_add_u32 s33, s33, s34
    s_lshl_b32 s34, s28, 12
    s_lshl_b32 s38, s28, 11
    s_waitcnt lgkmcnt(0)
    """)
    srd(a, 4, L * D * 2)
    srd(a, 8, P * D * 2)
    srd(a, 12, P * D * 2)
    for b in range(3):
        k1_dma_stage(a, b)
    a("s_mov_b32 s35, 3")
    a.label("K1_PLOOP")
    for b in range(4):
        a("s_waitcnt vmcnt(16)")
        a("s_barrier")
        k1_dma_stage(a, (b + 3) % 4)
    a("s_sub_u32 s35, s35, 1")
    a("s_cmp_lg_u32 s35, 0")
    a("s_cbranch_scc1 K1_PLOOP")
    a("s_waitcnt vmcnt(16)")
    a("s_barrier")
    k1_dma_stage(a, 3)
    a("s_waitcnt vmcnt(16)")
    a("s_barrier")
    a("s_waitcnt vmcnt(8)")
    a("s_barrier")
    a("s_waitcnt vmcnt(0)")
    a("s_barrier")
    a("s_endpgm")
    a.label("K1_MAIN")
    if PF1:
        a("""
    s_lshr_b32 s29, s2, 3              ; j
    s_mul_i32 s29, s29, 48
    v_add_u32 v1, s29, v0
    v_lshrrev_b32 v2, 9, v1
    v_and_b32 v1, 511, v1
    s_and_b32 s34, s2, 3
    s_lshl_b32 s34, s34, 9
    s_bfe_u32 s35, s2, 0x10002
    s_lshl_b32 s35, s35, 9
    v_mov_b32 v3, s35
    v_mov_b32 v4, s34
    v_cmp_eq_u32 vcc, 0, v2
    s_nop 1
    v_cndmask_b32 v3, v3, v4, vcc
    v_add_u32 v1, v1, v3
    v_lshlrev_b32 v1, 11, v1
    s_lshl_b32 s36, s28, 7
    v_add_u32 v1, s36, v1              ; + wave*128
    s_waitcnt lgkmcnt(0)
    v_mov_b32 v4, s4
    v_mov_b32 v5, s5
    v_mov_b32 v6, s8
    v_mov_b32 v9, s9
    v_cmp_eq_u32 vcc, 1, v2
    s_nop 1
    v_cndmask_b32 v4, v4, v6, vcc
    v_cndmask_b32 v5, v5, v9, vcc
    v_mov_b32 v6, s12
    v_mov_b32 v9, s13
    v_cmp_eq_u32 vcc, 2, v2
    s_nop 1
    v_cndmask_b32 v4, v4, v6, vcc
    v_cndmask_b32 v5, v5, v9, vcc
    v_add_co_u32 v4, vcc, v4, v1
    s_nop 1
    v_addc_co_u32 v5, vcc, 0, v5, vcc
    v_cmp_gt_u32 vcc, 48, v0
    s_and_saveexec_b64 s[36:37], vcc
    """)
        for i in range(4):
            a(f"global_load_dword v{240+i}, v[4:5], off offset:{i*512}")
        a("s_mov_b64 exec, s[36:37]")
    if PFC:
        a("""
    s_load_dwordx2 s[40:41], s[0:1], 40
    s_load_dwordx2 s[42:43], s[0:1], 48
    s_lshl_b32 s29, s2, 13
    v_lshlrev_b32 v1, 7, v0
    v_add_u32 v1, s29, v1
    s_waitcnt lgkmcnt(0)
    s_cmp_eq_u32 s28, 1
    s_cbranch_scc0 K1_PFC1
    global_load_dword v244, v1, s[40:41]
    """)
        a.label("K1_PFC1")
        a("""
    s_cmp_eq_u32 s28, 2
    s_cbranch_scc0 K1_PFC2
    global_load_dword v244, v1, s[42:43]
    """)
        a.label("K1_PFC2")
    if STAMP:
        a("s_waitcnt lgkmcnt(0)")
    stamp(a, 0, 16, 0)
    a("""
    s_lshr_b32 s26, s28, 1             ; s26 = wr
    s_and_b32 s27, s28, 1              ; s27 = wc
    v_and_b32 v7, 31, v0               ; n / m
    v_lshrrev_b32 v8, 5, v0            ; hb
    v_lshrrev_b32 v9, 2, v7
    v_and_b32 v9, 1, v9
    v_lshlrev_b32 v9, 5, v9
    v_and_b32 v10, 3, v7
    v_add_u32 v9, v9, v10
    v_lshrrev_b32 v10, 3, v7
    v_lshlrev_b32 v10, 2, v10
    v_add_u32 v9, v9, v10
    s_lshl_b32 s29, s26, 6
    v_add_u32 v9, s29, v9              ; T0
    v_lshrrev_b32 v10, 1, v9
    v_and_b32 v10, 7, v10
    v_xor_b32 v10, v8, v10
    v_lshlrev_b32 v10, 4, v10
    v_lshl_add_u32 v192, v9, 7, v10
    s_lshl_b32 s29, s27, 5
    v_add_u32 v9, s29, v7
    v_lshrrev_b32 v10, 1, v9
    v_and_b32 v10, 7, v10
    v_xor_b32 v10, v8, v10
    v_lshlrev_b32 v10, 4, v10
    v_lshl_add_u32 v196, v9, 7, v10
    v_add_u32 v196, 0x4000, v196
    """)
    for ks in range(1, 4):
        a(f"v_xor_b32 v{192+ks}, {32*ks}, v192")
        a(f"v_xor_b32 v{196+ks}, {32*ks}, v196")
    for i in range(8):
        a(f"v_add_u32 v{200+i}, 0x10000, v{192+i}")
    a("""
    s_lshl_b32 s29, s31, 6
    s_lshl_b32 s32, s27, 5
    s_add_u32 s29, s29, s32
    v_add_u32 v9, s29, v7
    v_lshlrev_b32 v9, 1, v9
    s_waitcnt lgkmcnt(0)
    """)
    a(f"""
    global_load_ushort v10, v9, s[20:21]
    global_load_ushort v11, v9, s[22:23]
    global_load_ushort v12, v9, s[24:25]
    s_cmp_lg_u32 s28, 0
    s_cbranch_scc1 K1_NOCLR
    s_lshl_b32 s29, s31, 14
    s_lshl_b32 s32, s30, 10
    s_add_u32 s29, s29, s32
    s_add_u32 s29, s29, {WS_AGG}
    v_lshlrev_b32 v1, 4, v0
    v_add_u32 v1, s29, v1
    v_mov_b32 v32, 0
    v_mov_b32 v33, 0
    v_mov_b32 v34, 0
    v_mov_b32 v35, 0
    s_lshl_b32 s29, s31, 2
    v_mov_b32 v2, s29
    v_mov_b32 v3, 1
    global_store_dwordx4 v1, v[32:35], s[16:17] sc1
    s_waitcnt vmcnt(0)
    v_cmp_eq_u32 vcc, 0, v0
    s_and_saveexec_b64 s[36:37], vcc
    global_atomic_add v2, v3, s[18:19]
    s_mov_b64 exec, s[36:37]
    s_branch K1_CLRD
    """)
    a.label("K1_NOCLR")
    a("s_waitcnt vmcnt(0)")
    a.label("K1_CLRD")
    for r in range(64, 128):
        a(f"v_mov_b32 v{r}, 0")

    a(f"""
    v_lshlrev_b32 v10, 16, v10
    v_lshlrev_b32 v11, 16, v11
    v_lshlrev_b32 v12, 16, v12
    """)
    exp_f32(a, 13, 12, 14, 15, 36, 37)
    a("""
    v_cvt_pk_bf16_f32 v13, v13, v13
    v_lshlrev_b32 v13, 16, v13
    v_mul_f32 v14, v13, v10
    v_mul_f32 v15, v13, v11
    """)
    exp_f32(a, 16, 14, 17, 18, 36, 37)
    a("""
    v_mul_f32 v17, 0.15915494, v15
    v_fract_f32 v17, v17
    v_sin_f32 v18, v17
    v_cos_f32 v19, v17
    s_nop 0
    v_mul_f32 v20, v16, v19            ; Lr
    v_mul_f32 v21, v16, v18            ; Li
    v_sub_f32 v22, 0, v21              ; -Li
    v_add_f32 v13, -1.0, v20
    v_mul_f32 v14, v13, v10
    v_fma_f32 v14, v21, v11, v14
    v_mul_f32 v15, v21, v10
    v_fma_f32 v15, -v13, v11, v15
    v_mul_f32 v16, v10, v10
    v_fma_f32 v16, v11, v11, v16
    v_rcp_f32 v17, v16
    s_nop 0
    v_fma_f32 v18, -v16, v17, 1.0
    v_fma_f32 v17, v17, v18, v17
    v_mul_f32 v23, v14, v17
    v_mul_f32 v24, v15, v17
    v_mul_f32 v25, v23, v20
    v_fma_f32 v25, -v24, v21, v25
    v_mul_f32 v26, v23, v21
    v_fma_f32 v26, v24, v20, v26
    v_add_f32 v23, v23, v23
    v_add_f32 v24, v24, v24
    """)
    csq(a, 13, 14, 20, 21, 17)
    csq(a, 15, 16, 13, 14, 17)
    csq(a, 13, 14, 15, 16, 17)
    csq(a, 15, 16, 13, 14, 17)
    csq(a, 27, 28, 15, 16, 17)
    csq(a, 13, 14, 27, 28, 17)
    csq(a, 29, 30, 13, 14, 17)

    ACC = [[64, 80], [96, 112]]
    sets = [(32, 36, 40, 44), (48, 52, 56, 60)]

    def stage(b, wait, dma):
        a("s_barrier")

        def rd(ks, s):
            if NOCOMP > 1:
                return
            A0, A1, B0, B1 = s
            va = (192 if b < 2 else 200) + ks
            vb = (196 if b < 2 else 204) + ks
            base = (b & 1) * K1_STAGE
            a(f"ds_read_b128 v[{A0}:{A0+3}], v{va} offset:{base}")
            a(f"ds_read_b128 v[{B0}:{B0+3}], v{vb} offset:{base}")
            a(f"ds_read_b128 v[{B1}:{B1+3}], v{vb} offset:{base + 8192}")
            a(f"ds_read_b128 v[{A1}:{A1+3}], v{va} offset:{base + 2048}")

        def mf(s):
            A0, A1, B0, B1 = s
            mfma(a, ACC[0][0], A0, B0)
            mfma(a, ACC[0][1], A0, B1)
            mfma(a, ACC[1][0], A1, B0)
            mfma(a, ACC[1][1], A1, B1)
        compute_stage(a, rd, mf, sets)

    stamp(a, 1, 16, 0)
    a("s_mov_b32 s35, 4")
    a.label("K1_LOOP")
    for b in range(4):
        stage(b, 16, True)
    a("s_sub_u32 s35, s35, 1")
    a("s_cmp_lg_u32 s35, 0")
    a("s_cbranch_scc1 K1_LOOP")
    a("s_nop 15")
    a("s_nop 3")
    stamp(a, 2, 16, 0)

    def gr(t):
        return ACC[t // 16][0] + (t % 16)

    def gi(t):
        return ACC[t // 16][1] + (t % 16)

    for t in range(1, 32):
        a(f"v_fmac_f32 v{gr(t)}, v20, v{gr(t-1)}")
        a(f"v_fmac_f32 v{gi(t)}, v20, v{gi(t-1)}")
        a(f"v_fmac_f32 v{gr(t)}, v22, v{gi(t-1)}")
        a(f"v_fmac_f32 v{gi(t)}, v21, v{gr(t-1)}")

    a(f"""
    s_lshl_b32 s29, s27, 5
    v_add_u32 v9, s29, v7
    v_lshlrev_b32 v10, 3, v9
    v_add_u32 v10, {K1_AGG}, v10
    s_lshl_b32 s29, s26, 1
    v_add_u32 v11, s29, v8
    v_lshlrev_b32 v11, 9, v11
    v_add_u32 v11, v11, v10
    ds_write2_b32 v11, v{gr(31)}, v{gi(31)} offset0:0 offset1:1
    s_lshl_b32 s29, s31, 2
    v_mov_b32 v34, s29
    s_mov_b32 s35, 0x40000
    """)
    a.label("K1_POLL")
    a("""
    global_load_dword v35, v34, s[18:19] sc1
    s_waitcnt vmcnt(0)
    v_readfirstlane_b32 s29, v35
    s_nop 3
    s_cmp_ge_u32 s29, 16
    s_cbranch_scc1 K1_POLL_DONE
    s_sub_u32 s35, s35, 1
    s_cmp_eq_u32 s35, 0
    s_cbranch_scc1 K1_POLL_DONE
    s_sleep 2
    s_branch K1_POLL
    """)
    a.label("K1_POLL_DONE")
    stamp(a, 3, 16, 0)
    a(f"""
    s_waitcnt lgkmcnt(0)
    s_barrier
    ds_read_b64 v[12:13], v10
    ds_read_b64 v[14:15], v10 offset:512
    ds_read_b64 v[16:17], v10 offset:1024
    ds_read_b64 v[18:19], v10 offset:1536
    s_lshl_b32 s29, s31, 14
    s_add_u32 s29, s29, {WS_AGG}
    v_lshlrev_b32 v9, 4, v9
    v_add_u32 v9, s29, v9
    s_lshl_b32 s29, s30, 10
    v_add_u32 v11, s29, v9
    s_waitcnt lgkmcnt(0)
    """)
    cfma(a, 36, 37, 12, 13, 27, 28, 14, 15)
    cfma(a, 38, 39, 36, 37, 27, 28, 16, 17)
    cfma(a, 32, 34, 38, 39, 27, 28, 18, 19)
    a("""
    v_mov_b32 v33, -1
    v_mov_b32 v35, -1
    s_cmp_lg_u32 s26, 0
    s_cbranch_scc1 K1_NOPUB
    v_cmp_gt_u32 vcc, 32, v0
    s_and_saveexec_b64 s[36:37], vcc
    global_store_dwordx4 v11, v[32:35], s[16:17] sc1
    s_mov_b64 exec, s[36:37]
    """)
    a.label("K1_NOPUB")
    a("""
    v_mov_b32 v36, 0
    v_mov_b32 v37, 0
    s_cmp_eq_u32 s30, 0
    s_cbranch_scc1 K1_CARRY_DONE
    v_add_u32 v40, 0x1000, v9
    v_add_u32 v41, 0x2000, v9
    v_add_u32 v42, 0x3000, v9
    s_mov_b32 s35, 0x40000
    """)
    EB = 128
    a.label("K1_GPOLL")
    for cc in range(15):
        if cc > 0:
            a(f"s_cmp_le_u32 s30, {cc}")
            a("s_cbranch_scc1 K1_GP_ISSUED")
        vb = [9, 40, 41, 42][cc // 4]
        a(f"global_load_dwordx4 v[{EB+4*cc}:{EB+4*cc+3}], v{vb}, s[16:17] offset:{(cc%4)*1024} sc1")
    a.label("K1_GP_ISSUED")
    a("s_waitcnt vmcnt(0)")
    a("v_mov_b32 v38, -1")
    for cc in range(15):
        if cc > 0:
            a(f"s_cmp_le_u32 s30, {cc}")
            a("s_cbranch_scc1 K1_GP_CHECKED")
        a(f"v_and_b32 v38, v38, v{EB+4*cc+1}")
        a(f"v_and_b32 v38, v38, v{EB+4*cc+3}")
    a.label("K1_GP_CHECKED")
    a("""
    v_cmp_ne_u32 vcc, -1, v38
    s_cbranch_vccz K1_GP_DONE
    s_sub_u32 s35, s35, 1
    s_cmp_eq_u32 s35, 0
    s_cbranch_scc1 K1_GP_DONE
    s_sleep 1
    s_branch K1_GPOLL
    """)
    a.label("K1_GP_DONE")
    a(f"v_mov_b32 v36, v{EB}")
    a(f"v_mov_b32 v37, v{EB+2}")
    for cc in range(1, 15):
        a(f"s_cmp_le_u32 s30, {cc}")
        a("s_cbranch_scc1 K1_CARRY_DONE")
        cfma(a, 38, 39, 36, 37, 29, 30, EB + 4 * cc, EB + 4 * cc + 2)
        a("v_mov_b32 v36, v38")
        a("v_mov_b32 v37, v39")
    a.label("K1_CARRY_DONE")
    stamp(a, 4, 16, 0)
    cfma(a, 38, 39, 36, 37, 27, 28, 12, 13)
    cfma(a, 40, 41, 38, 39, 27, 28, 14, 15)
    cfma(a, 42, 43, 40, 41, 27, 28, 16, 17)
    a("""
    v_cmp_lt_u32 vcc, 31, v0
    s_cmp_lg_u32 s26, 0
    s_cbranch_scc1 K1_SEL_HI
    v_cndmask_b32 v44, v36, v38, vcc
    v_cndmask_b32 v45, v37, v39, vcc
    s_branch K1_SEL_DONE
    """)
    a.label("K1_SEL_HI")
    a("""
    s_nop 0
    v_cndmask_b32 v44, v40, v42, vcc
    v_cndmask_b32 v45, v41, v43, vcc
    """)
    a.label("K1_SEL_DONE")
    a("""
    v_mul_f32 v46, v25, v44
    v_fma_f32 v46, -v26, v45, v46
    v_mul_f32 v47, v25, v45
    v_fma_f32 v47, v26, v44, v47
    v_add_f32 v46, v46, v46
    v_mul_f32 v47, -2.0, v47
    """)
    W = [(46, 47), (48, 49)]
    cur = 0
    for j in range(16):
        for h in range(2):
            t = 2 * j + h
            wr_, wi_ = W[cur]
            o_re, o_im = 50 + 2 * h, 51 + 2 * h
            a(f"v_fma_f32 v{o_re}, v23, v{gr(t)}, v{wr_}")
            a(f"v_fma_f32 v{o_im}, -v23, v{gi(t)}, v{wi_}")
            a(f"v_fma_f32 v{o_re}, -v24, v{gi(t)}, v{o_re}")
            a(f"v_fma_f32 v{o_im}, -v24, v{gr(t)}, v{o_im}")
            if t < 31:
                nr, ni = W[1 - cur]
                a(f"v_mul_f32 v{nr}, v20, v{wr_}")
                a(f"v_mul_f32 v{ni}, v20, v{wi_}")
                a(f"v_fmac_f32 v{nr}, v21, v{wi_}")
                a(f"v_fmac_f32 v{ni}, v22, v{wr_}")
                cur = 1 - cur
        a(f"v_cvt_pk_bf16_f32 v{64+j}, v50, v52")
        a(f"v_cvt_pk_bf16_f32 v{80+j}, v51, v53")
    PB = K1_PB
    a(f"""
    s_lshl_b32 s29, s27, 5
    v_add_u32 v9, s29, v7
    v_mul_u32_u24 v9, {PB}, v9
    s_lshl_b32 s29, s26, 7
    v_lshlrev_b32 v10, 6, v8
    v_add3_u32 v9, v9, v10, s29
    """)
    for i in range(4):
        a(f"ds_write_b128 v9, v[{64+4*i}:{67+4*i}] offset:{16*i}")
    for i in range(4):
        a(f"ds_write_b128 v9, v[{80+4*i}:{83+4*i}] offset:{64*PB + 16*i}")
    a(f"""
    v_lshrrev_b32 v10, 4, v0
    v_lshlrev_b32 v10, 3, v10
    v_lshrrev_b32 v11, 2, v0
    v_and_b32 v11, 3, v11
    v_add_u32 v10, v10, v11
    v_mul_u32_u24 v10, {PB}, v10
    v_and_b32 v11, 3, v0
    v_lshlrev_b32 v11, 3, v11
    s_lshl_b32 s29, s28, 6
    v_add3_u32 v10, v10, v11, s29
    v_and_b32 v11, 15, v0
    v_lshlrev_b32 v11, 12, v11
    v_lshrrev_b32 v12, 4, v0
    v_lshlrev_b32 v12, 4, v12
    v_add_u32 v11, v11, v12
    v_add_u32 v12, 0x10000, v11
    s_lshl_b32 s29, s30, 19
    s_lshl_b32 s35, s28, 17
    s_add_u32 s29, s29, s35
    s_lshl_b32 s35, s31, 7
    s_add_u32 s29, s29, s35
    s_mov_b32 s40, s16
    s_and_b32 s41, s17, 0xffff
    s_mov_b32 s42, {L*2048*2}
    s_mov_b32 s43, 0x00020000
    s_waitcnt lgkmcnt(0)
    s_barrier
    """)
    idx = 0
    regs = []
    for j in range(2):
        for im in range(2):
            for q in range(2):
                r0 = 64 + 4 * idx
                off = (64 * im + 32 * q) * PB + 32 * j
                a(f"ds_read_b64_tr_b16 v[{r0}:{r0+1}], v10 offset:{off}")
                a(f"ds_read_b64_tr_b16 v[{r0+2}:{r0+3}], v10 offset:{off + 4*PB}")
                regs.append((r0, j, im, q))
                idx += 1
    for n_, (r0, j, im, q) in enumerate(regs):
        a(f"s_waitcnt lgkmcnt({2*(7-n_)})")
        va = 11 if j == 0 else 12
        a(f"buffer_store_dwordx4 v[{r0}:{r0+3}], v{va}, s[40:43], s29 offen offset:{im*2048 + q*64}")
    if STAMP:
        a("s_waitcnt vmcnt(0)")
    stamp(a, 5, 16, 0)
    a.label("K1_END")
    a("s_endpgm")


K2_STAGE = 49152
K2_NB = 3
K2_LDS = K2_STAGE * K2_NB


def k2_dma_stage(a, b):
    if NODMA:
        return
    base = b * K2_STAGE
    for j in range(4):
        a(f"s_add_u32 m0, s34, {base + j*1024}")
        a("s_nop 0")
        a(f"buffer_load_dwordx4 v{1+j}, s[4:7], s32 offen lds")
    for j in range(2):
        a(f"s_add_u32 m0, s38, {base + 32768 + j*1024}")
        a("s_nop 0")
        a(f"buffer_load_dwordx4 v{5+j}, s[8:11], s33 offen lds")
    for j in range(4):
        a(f"s_add_u32 m0, s34, {base + 16384 + j*1024}")
        a("s_nop 0")
        a(f"buffer_load_dwordx4 v{1+j}, s[4:7], s36 offen lds")
    for j in range(2):
        a(f"s_add_u32 m0, s38, {base + 40960 + j*1024}")
        a("s_nop 0")
        a(f"buffer_load_dwordx4 v{5+j}, s[12:15], s33 offen lds")
    a("s_add_u32 s32, s32, 128")
    a("s_add_u32 s36, s36, 128")
    a("s_add_u32 s33, s33, 128")


def gen_k2(a):
    a.label("ssm_k2_kernel")
    a("""
    s_cmp_ge_u32 s2, 256
    s_cbranch_scc1 K2_END
    s_load_dwordx2 s[4:5], s[0:1], 88     ; ws (h')
    s_load_dwordx2 s[8:9], s[0:1], 40     ; C_re
    s_load_dwordx2 s[12:13], s[0:1], 48   ; C_im
    s_load_dwordx2 s[16:17], s[0:1], 0    ; x
    s_load_dwordx2 s[20:21], s[0:1], 72   ; out
    s_load_dwordx2 s[24:25], s[0:1], 64   ; Dskip
    """)
    a(WG_DECODE)
    a("""
    s_cmp_lt_u32 s28, 4
    s_cbranch_scc1 K2_MAIN
    s_sub_u32 s28, s28, 4
    v_lshrrev_b32 v7, 4, v0
    v_xor_b32 v7, v7, v0
    v_and_b32 v7, 7, v7
    v_lshlrev_b32 v7, 4, v7
    v_lshrrev_b32 v8, 3, v0
    v_lshl_add_u32 v1, v8, 12, v7
    v_xor_b32 v2, 64, v1
    v_add_u32 v2, 0x8000, v2
    v_add_u32 v3, 0x10000, v1
    v_add_u32 v4, 0x10000, v2
    v_lshl_add_u32 v5, v8, 11, v7
    v_xor_b32 v6, 64, v5
    v_add_u32 v6, 0x4000, v6
    s_lshl_b32 s32, s30, 19
    s_lshl_b32 s33, s28, 17
    s_add_u32 s32, s32, s33
    s_add_u32 s36, s32, 2048
    s_lshl_b32 s33, s31, 17
    s_lshl_b32 s34, s28, 15
    s_add_u32 s33, s33, s34
    s_lshl_b32 s34, s28, 12
    s_lshl_b32 s38, s28, 11
    s_waitcnt lgkmcnt(0)
    """)
    srd(a, 4, L * 2048 * 2)
    srd(a, 8, D * P * 2)
    srd(a, 12, D * P * 2)
    for b in range(2):
        k2_dma_stage(a, b)
    a("s_mov_b32 s35, 4")
    a.label("K2_PLOOP")
    for b in range(3):
        a("s_waitcnt vmcnt(12)")
        a("s_barrier")
        k2_dma_stage(a, (b + 2) % 3)
    a("s_sub_u32 s35, s35, 1")
    a("s_cmp_lg_u32 s35, 0")
    a("s_cbranch_scc1 K2_PLOOP")
    for b in range(2):
        a("s_waitcnt vmcnt(12)")
        a("s_barrier")
        k2_dma_stage(a, (b + 2) % 3)
    a("s_waitcnt vmcnt(12)")
    a("s_barrier")
    a("s_waitcnt vmcnt(0)")
    a("s_barrier")
    a("s_endpgm")
    a.label("K2_MAIN")
    if PF:
        a("""
    s_lshr_b32 s29, s2, 3
    s_and_b32 s32, s29, 7
    s_lshl_b32 s32, s32, 6
    v_add_u32 v1, s32, v0
    s_lshr_b32 s33, s29, 3
    s_and_b32 s34, s2, 3
    s_lshl_b32 s34, s34, 9
    s_bfe_u32 s35, s2, 0x10002
    s_lshl_b32 s35, s35, 9
    s_lshl_b32 s36, s28, 7
    s_waitcnt lgkmcnt(0)
    s_cmp_ge_u32 s33, 2
    s_cbranch_scc1 K2_PF_C
    v_add_u32 v1, s34, v1
    v_lshlrev_b32 v1, 12, v1
    s_lshl_b32 s33, s33, 11
    s_add_u32 s33, s33, s36
    v_add_u32 v1, s33, v1
    """)
        for i in range(4):
            a(f"global_load_dword v{240+i}, v1, s[4:5] offset:{i*512}")
        a("s_branch K2_PF_DONE")
        a.label("K2_PF_C")
        a("""
    v_add_u32 v1, s35, v1
    v_lshlrev_b32 v1, 11, v1
    v_add_u32 v1, s36, v1
    s_cmp_eq_u32 s33, 3
    s_cbranch_scc1 K2_PF_CI
    """)
        for i in range(4):
            a(f"global_load_dword v{240+i}, v1, s[8:9] offset:{i*512}")
        a("s_branch K2_PF_DONE")
        a.label("K2_PF_CI")
        for i in range(4):
            a(f"global_load_dword v{240+i}, v1, s[12:13] offset:{i*512}")
        a.label("K2_PF_DONE")
    a("""
    s_and_b32 s26, s28, 1              ; wm
    s_lshr_b32 s27, s28, 1             ; kh
    v_and_b32 v14, 31, v0
    v_lshrrev_b32 v15, 5, v0
    v_lshrrev_b32 v7, 1, v14
    v_and_b32 v7, 7, v7
    v_xor_b32 v7, v15, v7
    v_lshlrev_b32 v7, 4, v7
    s_lshl_b32 s29, s27, 14            ; kh*16384
    s_lshl_b32 s32, s26, 13            ; 64wm*128
    s_add_u32 s29, s29, s32
    v_lshlrev_b32 v8, 7, v14
    v_add3_u32 v144, v8, v7, s29
    s_lshl_b32 s29, s27, 13            ; kh*8192
    s_add_u32 s29, s29, 32768
    v_add3_u32 v148, v8, v7, s29
    """)
    for ks in range(1, 4):
        a(f"v_xor_b32 v{144+ks}, {32*ks}, v144")
        a(f"v_xor_b32 v{148+ks}, {32*ks}, v148")
    for b in range(1, 3):
        for i in range(8):
            a(f"v_add_u32 v{144+8*b+i}, {b*K2_STAGE}, v{144+i}")
    a("s_waitcnt lgkmcnt(0)")
    srd(a, 16, L * D * 2)
    srd(a, 20, L * D * 4)
    stamp(a, 0, 4, 1)
    for r in range(64, 128):
        a(f"v_mov_b32 v{r}, 0")

    sets = [(32, 36, 40, 44), (48, 52, 56, 60)]
    ACC = [[64, 80], [96, 112]]

    def stage(b, wait, dma):
        a("s_barrier")

        def rd(ks, s):
            if NOCOMP > 1:
                return
            A0, A1, B0, B1 = s
            va = 144 + 8 * b + ks
            vb = 148 + 8 * b + ks
            a(f"ds_read_b128 v[{A0}:{A0+3}], v{va}")
            a(f"ds_read_b128 v[{B0}:{B0+3}], v{vb}")
            a(f"ds_read_b128 v[{B1}:{B1+3}], v{vb} offset:4096")
            a(f"ds_read_b128 v[{A1}:{A1+3}], v{va} offset:4096")

        def mf(s):
            A0, A1, B0, B1 = s
            mfma(a, ACC[0][0], A0, B0)
            mfma(a, ACC[0][1], A0, B1)
            mfma(a, ACC[1][0], A1, B0)
            mfma(a, ACC[1][1], A1, B1)
        compute_stage(a, rd, mf, sets)

    stamp(a, 1, 4, 1)
    a("s_mov_b32 s35, 4")
    a.label("K2_LOOP")
    for b in range(3):
        stage(b, 12, True)
    a("s_sub_u32 s35, s35, 1")
    a("s_cmp_lg_u32 s35, 0")
    a("s_cbranch_scc1 K2_LOOP")
    stage(0, 12, True)
    stage(1, 12, True)
    stage(2, 12, False)
    a("""
    v_lshrrev_b32 v16, 4, v0
    v_and_b32 v17, 15, v0
    v_lshlrev_b32 v18, 11, v16
    v_lshl_add_u32 v18, v17, 3, v18
    s_lshl_b32 s29, s30, 18
    s_lshl_b32 s37, s28, 16
    s_add_u32 s29, s29, s37
    s_lshl_b32 s37, s31, 7
    s_add_u32 s29, s29, s37
    v_lshlrev_b32 v19, 3, v17
    v_add_u32 v19, s37, v19
    global_load_dwordx2 v[20:21], v19, s[24:25]
    """)
    for i in range(8):
        a(f"buffer_load_dwordx2 v[{128+2*i}:{129+2*i}], v18, s[16:19], s29 offen")
        if i < 7:
            a("s_add_u32 s29, s29, 8192")
    stage(0, 9, False)
    a("s_nop 15")
    a("s_nop 3")
    stamp(a, 2, 4, 1)
    a("s_barrier")
    a("""
    s_lshl_b32 s29, s27, 15
    s_lshl_b32 s37, s26, 14
    s_add_u32 s29, s29, s37
    v_lshlrev_b32 v1, 10, v15
    v_lshl_add_u32 v1, v14, 2, v1
    v_add_u32 v1, s29, v1
    """)
    for rb in range(2):
        for nb in range(2):
            for r in range(16):
                off = (32 * rb + (r & 3) + 8 * (r >> 2)) * 256 + nb * 128
                a(f"ds_write_b32 v1, v{ACC[rb][nb]+r} offset:{off}")
    a("""
    s_lshl_b32 s29, s28, 13
    v_lshlrev_b32 v2, 8, v16
    v_lshl_add_u32 v2, v17, 4, v2
    v_add_u32 v2, s29, v2
    v_lshlrev_b32 v3, 12, v16
    v_lshl_add_u32 v3, v17, 4, v3
    s_lshl_b32 s29, s30, 19
    s_lshl_b32 s37, s28, 17
    s_add_u32 s29, s29, s37
    s_lshl_b32 s37, s31, 8
    s_add_u32 s29, s29, s37
    s_waitcnt vmcnt(0) lgkmcnt(0)
    s_barrier
    v_lshlrev_b32 v22, 16, v20
    v_and_b32 v23, 0xffff0000, v20
    v_lshlrev_b32 v24, 16, v21
    v_and_b32 v25, 0xffff0000, v21
    """)
    for i in range(8):
        a(f"ds_read_b128 v[{64+8*i}:{67+8*i}], v2 offset:{i*1024}")
        a(f"ds_read_b128 v[{68+8*i}:{71+8*i}], v2 offset:{32768 + i*1024}")
    for i in range(8):
        xr = 128 + 2 * i
        A = 64 + 8 * i
        a(f"""
        v_lshlrev_b32 v26, 16, v{xr}
        v_and_b32 v27, 0xffff0000, v{xr}
        v_lshlrev_b32 v28, 16, v{xr+1}
        v_and_b32 v29, 0xffff0000, v{xr+1}
        v_mul_f32 v26, v26, v22
        v_mul_f32 v27, v27, v23
        v_mul_f32 v28, v28, v24
        v_mul_f32 v29, v29, v25
        v_cvt_pk_bf16_f32 v26, v26, v27
        v_cvt_pk_bf16_f32 v28, v28, v29
        v_and_b32 v27, 0xffff0000, v26
        v_lshlrev_b32 v26, 16, v26
        v_and_b32 v29, 0xffff0000, v28
        v_lshlrev_b32 v28, 16, v28
        s_waitcnt lgkmcnt({14-2*i})
        v_add_f32 v{A}, v{A}, v{A+4}
        v_add_f32 v{A+1}, v{A+1}, v{A+5}
        v_add_f32 v{A+2}, v{A+2}, v{A+6}
        v_add_f32 v{A+3}, v{A+3}, v{A+7}
        v_add_f32 v{A}, v{A}, v26
        v_add_f32 v{A+1}, v{A+1}, v27
        v_add_f32 v{A+2}, v{A+2}, v28
        v_add_f32 v{A+3}, v{A+3}, v29
        buffer_store_dwordx4 v[{A}:{A+3}], v3, s[20:23], s29 offen
        s_add_u32 s29, s29, 16384
        """)
    if STAMP:
        a("s_waitcnt vmcnt(0)")
    stamp(a, 3, 4, 1)
    a.label("K2_END")
    a("s_endpgm")


HEADER = """; S5 SSM (GEMM -> diagonal complex scan -> GEMM), generated by work/gen2.py (hand-designed schedule)
; @launch kernel=ssm_k1_kernel grid=(256,1,1) block=(512,1,1) lds={k1lds}
; @launch kernel=ssm_k2_kernel grid=(256,1,1) block=(512,1,1) lds={k2lds}
.amdgcn_target "amdgcn-amd-amdhsa--gfx950"
.text
"""

KD = """
.amdhsa_kernel {name}
  .amdhsa_next_free_vgpr {vgpr}
  .amdhsa_next_free_sgpr 64
  .amdhsa_accum_offset {vgpr}
  .amdhsa_group_segment_fixed_size 0
  .amdhsa_kernarg_size 96
  .amdhsa_user_sgpr_count 2
  .amdhsa_user_sgpr_kernarg_segment_ptr 1
  .amdhsa_system_sgpr_workgroup_id_x 1
  .amdhsa_float_denorm_mode_32 3
  .amdhsa_float_denorm_mode_16_64 3
.end_amdhsa_kernel
"""


def main():
    out = HEADER.format(k1lds=K1_LDS, k2lds=K2_LDS)
    a = Asm()
    a.lines.append(".globl ssm_k1_kernel\n.p2align 8\n.type ssm_k1_kernel,@function")
    gen_k1(a)
    a.lines.append(".globl ssm_k2_kernel\n.p2align 8\n.type ssm_k2_kernel,@function")
    gen_k2(a)
    out += a.text()
    out += '.section .rodata,"a"\n.p2align 6\n'
    out += KD.format(name="ssm_k1_kernel", vgpr=256 if (STAMP or PF1 or PFC) else 208)
    out += ".p2align 6\n"
    out += KD.format(name="ssm_k2_kernel", vgpr=256 if (STAMP or PF) else 168)
    path = sys.argv[1] if len(sys.argv) > 1 else "standalone__ssm_conv_s5__prompt.s"
    open(path, "w").write(out)
    print("wrote", path, len(out))


if __name__ == "__main__":
    main()
```

```python
import sys, os


def env(name, default=0):
    return int(os.environ.get(name, str(default)))


NOCOMP, NODMA, STAMP = env("NOCOMP"), env("NODMA"), env("STAMP")
PF1, PFC = env("PF1", 1), env("PFC", 1)

L, D, P = 2048, 1024, 1024
WS_AGG = 8 << 20
WS_STAMP = 16 << 20


class Asm:
    def __init__(self):
        self.lines = []

    def __call__(self, s=""):
        for ln in s.strip("\n").split("\n"):
            t = ln.strip()
            self.lines.append(("    " + t) if t else "")

    def label(self, s):
        self.lines.append(s + ":")

    def text(self):
        return "\n".join(self.lines) + "\n"


def stamp(a, idx, wsreg, kern):
    if not STAMP:
        return
    for nm, off, ins in (("ST", idx, "s_memrealtime"), ("SU", 8 + idx, "s_memtime")):
        a(f"""
        {ins} s[44:45]
        s_lshl_b32 s46, s2, 7
        s_add_u32 s46, s46, {WS_STAMP + off*8 + kern*65536}
        s_waitcnt lgkmcnt(0)
        v_mov_b32 v254, s44
        v_mov_b32 v255, s45
        v_mov_b32 v253, s46
        s_cmp_lg_u32 s28, 0
        s_cbranch_scc1 {nm}_{kern}_{idx}
        v_cmp_eq_u32 vcc, 0, v0
        s_and_saveexec_b64 s[46:47], vcc
        global_store_dwordx2 v253, v[254:255], s[{wsreg}:{wsreg+1}]
        s_mov_b64 exec, s[46:47]
        """)
        a.label(f"{nm}_{kern}_{idx}")


def srd(a, d, nbytes):
    a(f"s_and_b32 s{d+1}, s{d+1}, 0xffff")
    a(f"s_mov_b32 s{d+2}, {nbytes}")
    a(f"s_mov_b32 s{d+3}, 0x00020000")


def mfma(a, acc, A, B):
    if NOCOMP:
        return
    a(f"v_mfma_f32_32x32x16_bf16 v[{acc}:{acc+15}], v[{A}:{A+3}], v[{B}:{B+3}], v[{acc}:{acc+15}]")


LOG2E_HI, LOG2E_LO, LN2 = 0x3fb8aa3b, 0x32a57060, 0x3f317218


def exp_f32(a, dst, src, t0, t1, sA, sB):
    a(f"""
    s_mov_b32 s{sA}, {LOG2E_HI:#x}
    s_mov_b32 s{sB}, {LOG2E_LO:#x}
    v_mul_f32 v{t0}, s{sA}, v{src}
    v_fma_f32 v{t1}, v{src}, s{sA}, -v{t0}
    v_fma_f32 v{t1}, v{src}, s{sB}, v{t1}
    v_exp_f32 v{t0}, v{t0}
    s_mov_b32 s{sA}, {LN2:#x}
    v_mul_f32 v{t1}, s{sA}, v{t1}
    s_nop 0
    v_fma_f32 v{dst}, v{t0}, v{t1}, v{t0}
    """)


def csq(a, dr, di, sr, si, t):
    a(f"""
    v_mul_f32 v{t}, v{si}, v{si}
    v_fma_f32 v{dr}, v{sr}, v{sr}, -v{t}
    v_add_f32 v{t}, v{sr}, v{sr}
    v_mul_f32 v{di}, v{t}, v{si}
    """)


def cfma(a, dr, di, ar, ai, br, bi, cr, ci):
    a(f"""
    v_fma_f32 v{dr}, v{ar}, v{br}, v{cr}
    v_fma_f32 v{di}, v{ar}, v{bi}, v{ci}
    v_fma_f32 v{dr}, -v{ai}, v{bi}, v{dr}
    v_fma_f32 v{di}, v{ai}, v{br}, v{di}
    """)


WG_DECODE = """
    s_and_b32 s26, s2, 7
    s_lshr_b32 s27, s2, 3
    s_and_b32 s30, s26, 3
    s_lshl_b32 s30, s30, 2
    s_and_b32 s31, s27, 3
    s_add_u32 s30, s30, s31            ; s30 = chunk
    s_lshr_b32 s31, s26, 2
    s_lshl_b32 s31, s31, 3
    s_lshr_b32 s27, s27, 2
    s_add_u32 s31, s31, s27
    v_lshrrev_b32 v1, 6, v0
    v_and_b32 v0, 63, v0               ; v0 = lane
    v_readfirstlane_b32 s28, v1        ; s28 = wave
    s_nop 3
"""


def compute_stage(a, rd, mf, sets):
    rd(0, sets[0])
    for ks in range(4):
        if ks < 3:
            rd(ks + 1, sets[(ks + 1) & 1])
            a("s_waitcnt lgkmcnt(4)")
        else:
            a("s_waitcnt lgkmcnt(0)")
        mf(sets[ks & 1])


def dma(a, m0base, m0off, voff, srdr, soff):
    a(f"s_add_u32 m0, s{m0base}, {m0off}")
    a("s_nop 0")
    a(f"buffer_load_dwordx4 v{voff}, s[{srdr}:{srdr+3}], s{soff} offen lds")


K1_STAGE, K1_NB = 32768, 4
K1_AGG = K1_STAGE * K1_NB
K1_LDS = K1_AGG + 2048
K1_PB = 272


def k1_dma_stage(a, b):
    if NODMA:
        return
    base = b * K1_STAGE
    for j in range(4):
        dma(a, 34, base + j * 1024, 1 + j, 4, 32)
    for j in range(2):
        dma(a, 38, base + 16384 + j * 1024, 1 + j, 8, 33)
    for j in range(2):
        dma(a, 38, base + 24576 + j * 1024, 1 + j, 12, 33)
    a("s_add_u32 s32, s32, 128")
    a("s_add_u32 s33, s33, 128")


def gen_k1(a):
    a.label("ssm_k1_kernel")
    a("""
    s_cmp_ge_u32 s2, 256
    s_cbranch_scc1 K1_END
    s_load_dwordx2 s[4:5], s[0:1], 0
    s_load_dwordx2 s[8:9], s[0:1], 24
    s_load_dwordx2 s[12:13], s[0:1], 32
    s_load_dwordx2 s[16:17], s[0:1], 88
    s_load_dwordx2 s[18:19], s[0:1], 80
    s_load_dwordx2 s[20:21], s[0:1], 8
    s_load_dwordx2 s[22:23], s[0:1], 16
    s_load_dwordx2 s[24:25], s[0:1], 56
    s_load_dwordx2 s[40:41], s[0:1], 40
    s_load_dwordx2 s[42:43], s[0:1], 48
    """)
    a(WG_DECODE)
    a("""
    s_cmp_lt_u32 s28, 4
    s_cbranch_scc1 K1_MAIN
    s_sub_u32 s28, s28, 4
    v_lshrrev_b32 v1, 3, v0
    v_lshlrev_b32 v1, 11, v1
    v_lshrrev_b32 v2, 4, v0
    v_xor_b32 v2, v2, v0
    v_and_b32 v2, 7, v2
    v_lshlrev_b32 v2, 4, v2
    v_add_u32 v1, v1, v2
    v_xor_b32 v2, 64, v1
    v_add_u32 v2, 0x4000, v2
    v_add_u32 v3, 0x8000, v1
    v_add_u32 v4, 0x8000, v2
    s_lshl_b32 s32, s30, 18
    s_lshl_b32 s33, s28, 16
    s_add_u32 s32, s32, s33
    s_lshl_b32 s33, s31, 17
    s_lshl_b32 s34, s28, 15
    s_add_u32 s33, s33, s34
    s_lshl_b32 s34, s28, 12
    s_lshl_b32 s38, s28, 11
    s_waitcnt lgkmcnt(0)
    """)
    srd(a, 4, L * D * 2)
    srd(a, 8, P * D * 2)
    srd(a, 12, P * D * 2)
    for b in range(3):
        k1_dma_stage(a, b)
    a("s_mov_b32 s35, 3")
    a.label("K1_PLOOP")
    for b in range(4):
        a("s_waitcnt vmcnt(16)")
        a("s_barrier")
        k1_dma_stage(a, (b + 3) % 4)
    a("""
    s_sub_u32 s35, s35, 1
    s_cmp_lg_u32 s35, 0
    s_cbranch_scc1 K1_PLOOP
    s_waitcnt vmcnt(16)
    s_barrier
    """)
    k1_dma_stage(a, 3)
    a("""
    s_waitcnt vmcnt(16)
    s_barrier
    s_waitcnt vmcnt(8)
    s_barrier
    s_waitcnt vmcnt(0)
    s_barrier
    s_endpgm
    """)

    a.label("K1_MAIN")
    a("""
    s_lshr_b32 s26, s28, 1             ; wr
    s_and_b32 s27, s28, 1              ; wc
    v_and_b32 v7, 31, v0               ; n / m
    v_lshrrev_b32 v8, 5, v0            ; hb
    s_lshl_b32 s29, s31, 6
    s_lshl_b32 s32, s27, 5
    s_add_u32 s29, s29, s32
    v_add_u32 v9, s29, v7
    v_lshlrev_b32 v9, 1, v9
    v_mov_b32 v244, 0
    s_waitcnt lgkmcnt(0)
    s_mov_b32 s48, s4
    s_mov_b32 s49, s5
    """)
    stamp(a, 0, 16, 0)
    a(f"""
    global_load_ushort v10, v9, s[20:21]
    global_load_ushort v11, v9, s[22:23]
    global_load_ushort v12, v9, s[24:25]
    s_cmp_lg_u32 s28, 0
    s_cbranch_scc1 K1_NOCLR
    s_lshl_b32 s29, s31, 14
    s_lshl_b32 s32, s30, 10
    s_add_u32 s29, s29, s32
    s_add_u32 s29, s29, {WS_AGG}
    v_lshlrev_b32 v1, 4, v0
    v_add_u32 v1, s29, v1
    v_mov_b32 v32, 0
    v_mov_b32 v33, 0
    v_mov_b32 v34, 0
    v_mov_b32 v35, 0
    s_lshl_b32 s29, s31, 2
    v_mov_b32 v2, s29
    v_mov_b32 v3, 1
    global_store_dwordx4 v1, v[32:35], s[16:17] sc1
    s_waitcnt vmcnt(0)
    v_cmp_eq_u32 vcc, 0, v0
    s_and_saveexec_b64 s[36:37], vcc
    global_atomic_add v2, v3, s[18:19]
    s_mov_b64 exec, s[36:37]
    """)
    if PFC:
        a("""
        s_lshl_b32 s29, s2, 13
        v_lshlrev_b32 v1, 7, v0
        v_add_u32 v1, s29, v1
        global_load_dword v245, v1, s[40:41]
        global_load_dword v246, v1, s[42:43]
        """)
    a("s_branch K1_CLRD")
    a.label("K1_NOCLR")
    if PF1:
        a("""
        s_lshr_b32 s29, s2, 3
        s_lshl_b32 s29, s29, 4             ; 16*j
        s_and_b32 s32, s2, 3
        s_bfe_u32 s33, s2, 0x10002
        s_cmp_eq_u32 s28, 1
        s_cselect_b32 s32, s32, s33
        s_lshl_b32 s32, s32, 9
        s_add_u32 s29, s29, s32
        v_and_b32 v1, 15, v0
        v_add_u32 v1, s29, v1
        v_lshlrev_b32 v1, 11, v1
        v_lshrrev_b32 v2, 4, v0
        v_lshl_add_u32 v1, v2, 7, v1
        s_cmp_eq_u32 s28, 2
        s_cbranch_scc1 K1_PFB
        s_cmp_eq_u32 s28, 3
        s_cbranch_scc1 K1_PFBI
        """)
        blocks = range(4) if PF1 == 1 else [1]
        a("s_mov_b32 s48, s4")
        a("s_mov_b32 s49, s5")
        a("s_branch K1_PFD")
        a.label("K1_PFB")
        a("s_mov_b32 s48, s8")
        a("s_mov_b32 s49, s9")
        a("s_branch K1_PFD")
        a.label("K1_PFBI")
        a("s_mov_b32 s48, s12")
        a("s_mov_b32 s49, s13")
        a.label("K1_PFD")
        for i in blocks:
            a(f"global_load_dword v{240+i}, v1, s[48:49] offset:{i*512}")
        a("v_add_u32 v244, 1024, v1")
        a(f"s_waitcnt vmcnt({len(blocks)})")
    else:
        a("s_waitcnt vmcnt(0)")
    a.label("K1_CLRD")
    a("""
    v_lshrrev_b32 v1, 2, v7
    v_and_b32 v1, 1, v1
    v_lshlrev_b32 v1, 5, v1
    v_and_b32 v2, 3, v7
    v_add_u32 v1, v1, v2
    v_lshrrev_b32 v2, 3, v7
    v_lshlrev_b32 v2, 2, v2
    v_add_u32 v1, v1, v2
    s_lshl_b32 s29, s26, 6
    v_add_u32 v1, s29, v1
    v_lshrrev_b32 v2, 1, v1
    v_and_b32 v2, 7, v2
    v_xor_b32 v2, v8, v2
    v_lshlrev_b32 v2, 4, v2
    v_lshl_add_u32 v192, v1, 7, v2
    s_lshl_b32 s29, s27, 5
    v_add_u32 v1, s29, v7
    v_lshrrev_b32 v2, 1, v1
    v_and_b32 v2, 7, v2
    v_xor_b32 v2, v8, v2
    v_lshlrev_b32 v2, 4, v2
    v_lshl_add_u32 v196, v1, 7, v2
    v_add_u32 v196, 0x4000, v196
    """)
    for ks in range(1, 4):
        a(f"v_xor_b32 v{192+ks}, {32*ks}, v192")
        a(f"v_xor_b32 v{196+ks}, {32*ks}, v196")
    for i in range(8):
        a(f"v_add_u32 v{200+i}, 0x10000, v{192+i}")
    for r in range(64, 128):
        a(f"v_mov_b32 v{r}, 0")
    a("""
    v_lshlrev_b32 v10, 16, v10
    v_lshlrev_b32 v11, 16, v11
    v_lshlrev_b32 v12, 16, v12
    """)
    exp_f32(a, 13, 12, 14, 15, 36, 37)
    a("""
    v_cvt_pk_bf16_f32 v13, v13, v13
    v_lshlrev_b32 v13, 16, v13
    v_mul_f32 v14, v13, v10
    v_mul_f32 v15, v13, v11
    """)
    exp_f32(a, 16, 14, 17, 18, 36, 37)
    a("""
    v_mul_f32 v17, 0.15915494, v15
    v_fract_f32 v17, v17
    v_sin_f32 v18, v17
    v_cos_f32 v19, v17
    s_nop 0
    v_mul_f32 v20, v16, v19            ; Lr
    v_mul_f32 v21, v16, v18            ; Li
    v_sub_f32 v22, 0, v21              ; -Li
    v_add_f32 v13, -1.0, v20
    v_mul_f32 v14, v13, v10
    v_fma_f32 v14, v21, v11, v14
    v_mul_f32 v15, v21, v10
    v_fma_f32 v15, -v13, v11, v15
    v_mul_f32 v16, v10, v10
    v_fma_f32 v16, v11, v11, v16
    v_rcp_f32 v17, v16
    s_nop 0
    v_fma_f32 v18, -v16, v17, 1.0
    v_fma_f32 v17, v17, v18, v17
    v_mul_f32 v23, v14, v17            ; cr
    v_mul_f32 v24, v15, v17            ; ci
    v_mul_f32 v25, v23, v20
    v_fma_f32 v25, -v24, v21, v25
    v_mul_f32 v26, v23, v21
    v_fma_f32 v26, v24, v20, v26       ; q (im)
    v_add_f32 v208, v23, v23           ; (2cr,2cr)
    v_add_f32 v209, v23, v23
    v_mul_f32 v210, -2.0, v24          ; (-2ci,-2ci)
    v_mul_f32 v211, -2.0, v24
    v_mul_f32 v212, -2.0, v23          ; (-2cr,-2cr)
    v_mul_f32 v213, -2.0, v23
    """)
    csq(a, 13, 14, 20, 21, 17)
    a("""
    v_mov_b32 v214, v13                ; (L2r,L2r)
    v_mov_b32 v215, v13
    v_mov_b32 v216, v14                ; (L2i,L2i)
    v_mov_b32 v217, v14
    v_sub_f32 v218, 0, v14             ; (-L2i,-L2i)
    v_sub_f32 v219, 0, v14
    """)
    csq(a, 15, 16, 13, 14, 17)
    csq(a, 13, 14, 15, 16, 17)
    csq(a, 15, 16, 13, 14, 17)
    csq(a, 27, 28, 15, 16, 17)
    csq(a, 13, 14, 27, 28, 17)
    csq(a, 29, 30, 13, 14, 17)

    ACC = [[64, 80], [96, 112]]
    sets = [(32, 36, 40, 44), (48, 52, 56, 60)]

    def stage(b):
        a("s_barrier")

        def rd(ks, s):
            if NOCOMP > 1:
                return
            A0, A1, B0, B1 = s
            va = (192 if b < 2 else 200) + ks
            vb = (196 if b < 2 else 204) + ks
            base = (b & 1) * K1_STAGE
            a(f"ds_read_b128 v[{A0}:{A0+3}], v{va} offset:{base}")
            a(f"ds_read_b128 v[{B0}:{B0+3}], v{vb} offset:{base}")
            a(f"ds_read_b128 v[{B1}:{B1+3}], v{vb} offset:{base + 8192}")
            a(f"ds_read_b128 v[{A1}:{A1+3}], v{va} offset:{base + 2048}")

        def mf(s):
            A0, A1, B0, B1 = s
            mfma(a, ACC[0][0], A0, B0)
            mfma(a, ACC[0][1], A0, B1)
            mfma(a, ACC[1][0], A1, B0)
            mfma(a, ACC[1][1], A1, B1)
        compute_stage(a, rd, mf, sets)

    stamp(a, 1, 16, 0)
    a("s_mov_b32 s35, 4")
    a.label("K1_LOOP")
    if PF1 == 2:
        a("""
        s_cmp_eq_u32 s28, 0
        s_cbranch_scc1 K1_LPF
        s_cmp_lt_u32 s35, 3
        s_cbranch_scc1 K1_LPF
        global_load_dword v240, v244, s[48:49]
        v_add_u32 v244, 512, v244
        """)
        a.label("K1_LPF")
    for b in range(4):
        stage(b)
    a("""
    s_sub_u32 s35, s35, 1
    s_cmp_lg_u32 s35, 0
    s_cbranch_scc1 K1_LOOP
    s_nop 15
    s_nop 3
    """)
    stamp(a, 2, 16, 0)

    def gr(t):
        return ACC[t // 16][0] + (t % 16)

    def gi(t):
        return ACC[t // 16][1] + (t % 16)

    a("""
    s_lshl_b32 s29, s31, 2
    v_mov_b32 v34, s29
    global_load_dword v35, v34, s[18:19] sc1
    """)
    for t in range(1, 32):
        a(f"v_fmac_f32 v{gr(t)}, v20, v{gr(t-1)}")
        a(f"v_fmac_f32 v{gi(t)}, v20, v{gi(t-1)}")
        a(f"v_fmac_f32 v{gr(t)}, v22, v{gi(t-1)}")
        a(f"v_fmac_f32 v{gi(t)}, v21, v{gr(t-1)}")
    a(f"""
    s_lshl_b32 s29, s27, 5
    v_add_u32 v9, s29, v7
    v_lshlrev_b32 v10, 3, v9
    v_add_u32 v10, {K1_AGG}, v10
    s_lshl_b32 s29, s26, 1
    v_add_u32 v11, s29, v8
    v_lshlrev_b32 v11, 9, v11
    v_add_u32 v11, v11, v10
    ds_write2_b32 v11, v{gr(31)}, v{gi(31)} offset0:0 offset1:1
    s_mov_b32 s35, 0x40000
    """)
    a.label("K1_POLL")
    a("""
    s_waitcnt vmcnt(0)
    v_readfirstlane_b32 s29, v35
    s_nop 3
    s_cmp_ge_u32 s29, 16
    s_cbranch_scc1 K1_POLL_DONE
    s_sub_u32 s35, s35, 1
    s_cmp_eq_u32 s35, 0
    s_cbranch_scc1 K1_POLL_DONE
    s_sleep 2
    global_load_dword v35, v34, s[18:19] sc1
    s_branch K1_POLL
    """)
    a.label("K1_POLL_DONE")
    stamp(a, 3, 16, 0)
    a(f"""
    s_waitcnt lgkmcnt(0)
    s_barrier
    ds_read_b64 v[12:13], v10
    ds_read_b64 v[14:15], v10 offset:512
    ds_read_b64 v[16:17], v10 offset:1024
    ds_read_b64 v[18:19], v10 offset:1536
    s_lshl_b32 s29, s31, 14
    s_add_u32 s29, s29, {WS_AGG}
    v_lshlrev_b32 v9, 4, v9
    v_add_u32 v9, s29, v9
    s_lshl_b32 s29, s30, 10
    v_add_u32 v11, s29, v9
    s_waitcnt lgkmcnt(0)
    """)
    cfma(a, 36, 37, 12, 13, 27, 28, 14, 15)
    cfma(a, 38, 39, 36, 37, 27, 28, 16, 17)
    cfma(a, 32, 34, 38, 39, 27, 28, 18, 19)
    a("""
    v_mov_b32 v33, -1
    v_mov_b32 v35, -1
    s_cmp_lg_u32 s26, 0
    s_cbranch_scc1 K1_NOPUB
    v_cmp_gt_u32 vcc, 32, v0
    s_and_saveexec_b64 s[36:37], vcc
    global_store_dwordx4 v11, v[32:35], s[16:17] sc1
    s_mov_b64 exec, s[36:37]
    """)
    a.label("K1_NOPUB")
    X, PI = 128, 160

    def xr(t):
        return X + t

    def pi_(t):
        return PI + t
    for t in range(0, 32, 2):
        a(f"v_pk_mul_f32 v[{xr(t)}:{xr(t)+1}], v[{gr(t)}:{gr(t)+1}], v[208:209]")
        a(f"v_pk_fma_f32 v[{xr(t)}:{xr(t)+1}], v[{gi(t)}:{gi(t)+1}], v[210:211], v[{xr(t)}:{xr(t)+1}]")
        a(f"v_pk_mul_f32 v[{gi(t)}:{gi(t)+1}], v[{gi(t)}:{gi(t)+1}], v[212:213]")
        a(f"v_pk_fma_f32 v[{gi(t)}:{gi(t)+1}], v[{gr(t)}:{gr(t)+1}], v[210:211], v[{gi(t)}:{gi(t)+1}]")
    a(f"""
    v_mov_b32 v{gr(0)}, 1.0
    v_mov_b32 v{gr(1)}, v20
    v_mov_b32 v{pi_(0)}, 0
    v_mov_b32 v{pi_(1)}, v22
    """)
    for t in range(2, 32, 2):
        pr0, pi0, pr1, pi1 = gr(t - 2), pi_(t - 2), gr(t), pi_(t)
        a(f"v_pk_mul_f32 v[{pr1}:{pr1+1}], v[{pr0}:{pr0+1}], v[214:215]")
        a(f"v_pk_mul_f32 v[{pi1}:{pi1+1}], v[{pi0}:{pi0+1}], v[214:215]")
        a(f"v_pk_fma_f32 v[{pr1}:{pr1+1}], v[{pi0}:{pi0+1}], v[216:217], v[{pr1}:{pr1+1}]")
        a(f"v_pk_fma_f32 v[{pi1}:{pi1+1}], v[{pr0}:{pr0+1}], v[218:219], v[{pi1}:{pi1+1}]")
    a("""
    v_mov_b32 v36, 0
    v_mov_b32 v37, 0
    s_cmp_eq_u32 s30, 0
    s_cbranch_scc1 K1_CARRY_DONE
    v_add_u32 v40, 0x1000, v9
    v_add_u32 v41, 0x2000, v9
    v_add_u32 v42, 0x3000, v9
    s_mov_b32 s35, 0x40000
    """)
    EB = 192
    a.label("K1_GPOLL")
    for cc in range(15):
        if cc > 0:
            a(f"s_cmp_le_u32 s30, {cc}")
            a("s_cbranch_scc1 K1_GP_ISSUED")
        vb = [9, 40, 41, 42][cc // 4]
        a(f"global_load_dwordx4 v[{EB+4*cc}:{EB+4*cc+3}], v{vb}, s[16:17] offset:{(cc%4)*1024} sc1")
    a.label("K1_GP_ISSUED")
    a("s_waitcnt vmcnt(0)")
    a("v_mov_b32 v38, -1")
    for cc in range(15):
        if cc > 0:
            a(f"s_cmp_le_u32 s30, {cc}")
            a("s_cbranch_scc1 K1_GP_CHECKED")
        a(f"v_and_b32 v38, v38, v{EB+4*cc+1}")
        a(f"v_and_b32 v38, v38, v{EB+4*cc+3}")
    a.label("K1_GP_CHECKED")
    a("""
    v_cmp_ne_u32 vcc, -1, v38
    s_cbranch_vccz K1_GP_DONE
    s_sub_u32 s35, s35, 1
    s_cmp_eq_u32 s35, 0
    s_cbranch_scc1 K1_GP_DONE
    s_sleep 1
    s_branch K1_GPOLL
    """)
    a.label("K1_GP_DONE")
    a(f"v_mov_b32 v36, v{EB}")
    a(f"v_mov_b32 v37, v{EB+2}")
    for cc in range(1, 15):
        a(f"s_cmp_le_u32 s30, {cc}")
        a("s_cbranch_scc1 K1_CARRY_DONE")
        cfma(a, 38, 39, 36, 37, 29, 30, EB + 4 * cc, EB + 4 * cc + 2)
        a("v_mov_b32 v36, v38")
        a("v_mov_b32 v37, v39")
    a.label("K1_CARRY_DONE")
    stamp(a, 4, 16, 0)
    cfma(a, 38, 39, 36, 37, 27, 28, 12, 13)
    cfma(a, 40, 41, 38, 39, 27, 28, 14, 15)
    cfma(a, 42, 43, 40, 41, 27, 28, 16, 17)
    a("""
    v_cmp_lt_u32 vcc, 31, v0
    s_cmp_lg_u32 s26, 0
    s_cbranch_scc1 K1_SEL_HI
    v_cndmask_b32 v44, v36, v38, vcc
    v_cndmask_b32 v45, v37, v39, vcc
    s_branch K1_SEL_DONE
    """)
    a.label("K1_SEL_HI")
    a("""
    s_nop 0
    v_cndmask_b32 v44, v40, v42, vcc
    v_cndmask_b32 v45, v41, v43, vcc
    """)
    a.label("K1_SEL_DONE")
    a("""
    v_mul_f32 v46, v25, v44
    v_fma_f32 v46, -v26, v45, v46
    v_mul_f32 v47, v25, v45
    v_fma_f32 v47, v26, v44, v47
    v_add_f32 v12, v46, v46
    v_add_f32 v13, v46, v46
    v_mul_f32 v14, -2.0, v47
    v_mul_f32 v15, -2.0, v47
    v_add_f32 v16, v47, v47
    v_add_f32 v17, v47, v47
    """)
    for j in range(16):
        t = 2 * j
        pr, pi = gr(t), pi_(t)
        a(f"v_pk_fma_f32 v[{xr(t)}:{xr(t)+1}], v[{pr}:{pr+1}], v[12:13], v[{xr(t)}:{xr(t)+1}]")
        a(f"v_pk_fma_f32 v[{gi(t)}:{gi(t)+1}], v[{pr}:{pr+1}], v[14:15], v[{gi(t)}:{gi(t)+1}]")
        a(f"v_pk_fma_f32 v[{xr(t)}:{xr(t)+1}], v[{pi}:{pi+1}], v[16:17], v[{xr(t)}:{xr(t)+1}]")
        a(f"v_pk_fma_f32 v[{gi(t)}:{gi(t)+1}], v[{pi}:{pi+1}], v[12:13], v[{gi(t)}:{gi(t)+1}]")
        a(f"v_cvt_pk_bf16_f32 v{32+j}, v{xr(t)}, v{xr(t)+1}")
        a(f"v_cvt_pk_bf16_f32 v{48+j}, v{gi(t)}, v{gi(t)+1}")
    PB = K1_PB
    a(f"""
    s_lshl_b32 s29, s27, 5
    v_add_u32 v9, s29, v7
    v_mul_u32_u24 v9, {PB}, v9
    s_lshl_b32 s29, s26, 7
    v_lshlrev_b32 v10, 6, v8
    v_add3_u32 v9, v9, v10, s29
    """)
    for i in range(4):
        a(f"ds_write_b128 v9, v[{32+4*i}:{35+4*i}] offset:{16*i}")
    for i in range(4):
        a(f"ds_write_b128 v9, v[{48+4*i}:{51+4*i}] offset:{64*PB + 16*i}")
    a(f"""
    v_lshrrev_b32 v10, 4, v0
    v_lshlrev_b32 v10, 3, v10
    v_lshrrev_b32 v11, 2, v0
    v_and_b32 v11, 3, v11
    v_add_u32 v10, v10, v11
    v_mul_u32_u24 v10, {PB}, v10
    v_and_b32 v11, 3, v0
    v_lshlrev_b32 v11, 3, v11
    s_lshl_b32 s29, s28, 6
    v_add3_u32 v10, v10, v11, s29
    v_and_b32 v11, 15, v0
    v_lshlrev_b32 v11, 12, v11
    v_lshrrev_b32 v12, 4, v0
    v_lshlrev_b32 v12, 4, v12
    v_add_u32 v11, v11, v12
    v_add_u32 v12, 0x10000, v11
    s_lshl_b32 s29, s30, 19
    s_lshl_b32 s35, s28, 17
    s_add_u32 s29, s29, s35
    s_lshl_b32 s35, s31, 7
    s_add_u32 s29, s29, s35
    s_mov_b32 s40, s16
    s_and_b32 s41, s17, 0xffff
    s_mov_b32 s42, {L*2048*2}
    s_mov_b32 s43, 0x00020000
    s_waitcnt lgkmcnt(0)
    s_barrier
    """)
    regs = []
    for j in range(2):
        for im in range(2):
            for q in range(2):
                r0 = 64 + 4 * len(regs)
                off = (64 * im + 32 * q) * PB + 32 * j
                a(f"ds_read_b64_tr_b16 v[{r0}:{r0+1}], v10 offset:{off}")
                a(f"ds_read_b64_tr_b16 v[{r0+2}:{r0+3}], v10 offset:{off + 4*PB}")
                regs.append((r0, j, im, q))
    for n_, (r0, j, im, q) in enumerate(regs):
        a(f"s_waitcnt lgkmcnt({2*(7-n_)})")
        va = 11 if j == 0 else 12
        a(f"buffer_store_dwordx4 v[{r0}:{r0+3}], v{va}, s[40:43], s29 offen offset:{im*2048 + q*64}")
    if STAMP:
        a("s_waitcnt vmcnt(0)")
    stamp(a, 5, 16, 0)
    a.label("K1_END")
    a("s_endpgm")


K2_STAGE, K2_NB = 49152, 3
K2_LDS = K2_STAGE * K2_NB


def k2_dma_stage(a, b):
    if NODMA:
        return
    base = b * K2_STAGE
    for j in range(4):
        dma(a, 34, base + j * 1024, 1 + j, 4, 32)
    for j in range(2):
        dma(a, 38, base + 32768 + j * 1024, 5 + j, 8, 33)
    for j in range(4):
        dma(a, 34, base + 16384 + j * 1024, 1 + j, 4, 36)
    for j in range(2):
        dma(a, 38, base + 40960 + j * 1024, 5 + j, 12, 33)
    a("s_add_u32 s32, s32, 128")
    a("s_add_u32 s36, s36, 128")
    a("s_add_u32 s33, s33, 128")


def gen_k2(a):
    a.label("ssm_k2_kernel")
    a("""
    s_cmp_ge_u32 s2, 256
    s_cbranch_scc1 K2_END
    s_load_dwordx2 s[4:5], s[0:1], 88     ; ws (h')
    s_load_dwordx2 s[8:9], s[0:1], 40     ; C_re
    s_load_dwordx2 s[12:13], s[0:1], 48   ; C_im
    s_load_dwordx2 s[16:17], s[0:1], 0    ; x
    s_load_dwordx2 s[20:21], s[0:1], 72   ; out
    s_load_dwordx2 s[24:25], s[0:1], 64   ; Dskip
    """)
    a(WG_DECODE)
    a("""
    s_cmp_lt_u32 s28, 4
    s_cbranch_scc1 K2_MAIN
    s_sub_u32 s28, s28, 4
    v_lshrrev_b32 v7, 4, v0
    v_xor_b32 v7, v7, v0
    v_and_b32 v7, 7, v7
    v_lshlrev_b32 v7, 4, v7
    v_lshrrev_b32 v8, 3, v0
    v_lshl_add_u32 v1, v8, 12, v7
    v_xor_b32 v2, 64, v1
    v_add_u32 v2, 0x8000, v2
    v_add_u32 v3, 0x10000, v1
    v_add_u32 v4, 0x10000, v2
    v_lshl_add_u32 v5, v8, 11, v7
    v_xor_b32 v6, 64, v5
    v_add_u32 v6, 0x4000, v6
    s_lshl_b32 s32, s30, 19
    s_lshl_b32 s33, s28, 17
    s_add_u32 s32, s32, s33
    s_add_u32 s36, s32, 2048
    s_lshl_b32 s33, s31, 17
    s_lshl_b32 s34, s28, 15
    s_add_u32 s33, s33, s34
    s_lshl_b32 s34, s28, 12
    s_lshl_b32 s38, s28, 11
    s_waitcnt lgkmcnt(0)
    """)
    srd(a, 4, L * 2048 * 2)
    srd(a, 8, D * P * 2)
    srd(a, 12, D * P * 2)
    for b in range(2):
        k2_dma_stage(a, b)
    a("s_mov_b32 s35, 4")
    a.label("K2_PLOOP")
    for b in range(3):
        a("s_waitcnt vmcnt(12)")
        a("s_barrier")
        k2_dma_stage(a, (b + 2) % 3)
    a("""
    s_sub_u32 s35, s35, 1
    s_cmp_lg_u32 s35, 0
    s_cbranch_scc1 K2_PLOOP
    """)
    for b in range(2):
        a("s_waitcnt vmcnt(12)")
        a("s_barrier")
        k2_dma_stage(a, (b + 2) % 3)
    a("""
    s_waitcnt vmcnt(12)
    s_barrier
    s_waitcnt vmcnt(0)
    s_barrier
    s_endpgm
    """)
    a.label("K2_MAIN")
    a("""
    s_and_b32 s26, s28, 1              ; wm
    s_lshr_b32 s27, s28, 1             ; kh
    v_and_b32 v14, 31, v0
    v_lshrrev_b32 v15, 5, v0
    v_lshrrev_b32 v7, 1, v14
    v_and_b32 v7, 7, v7
    v_xor_b32 v7, v15, v7
    v_lshlrev_b32 v7, 4, v7
    s_lshl_b32 s29, s27, 14
    s_lshl_b32 s32, s26, 13
    s_add_u32 s29, s29, s32
    v_lshlrev_b32 v8, 7, v14
    v_add3_u32 v144, v8, v7, s29
    s_lshl_b32 s29, s27, 13
    s_add_u32 s29, s29, 32768
    v_add3_u32 v148, v8, v7, s29
    """)
    for ks in range(1, 4):
        a(f"v_xor_b32 v{144+ks}, {32*ks}, v144")
        a(f"v_xor_b32 v{148+ks}, {32*ks}, v148")
    for b in range(1, 3):
        for i in range(8):
            a(f"v_add_u32 v{144+8*b+i}, {b*K2_STAGE}, v{144+i}")
    a("s_waitcnt lgkmcnt(0)")
    srd(a, 16, L * D * 2)
    srd(a, 20, L * D * 4)
    stamp(a, 0, 4, 1)
    a("""
    v_lshrrev_b32 v16, 4, v0
    v_and_b32 v17, 15, v0
    v_lshlrev_b32 v18, 11, v16
    v_lshl_add_u32 v18, v17, 3, v18
    s_lshl_b32 s29, s30, 18
    s_lshl_b32 s37, s28, 16
    s_add_u32 s29, s29, s37
    s_lshl_b32 s37, s31, 7
    s_add_u32 s29, s29, s37
    v_lshlrev_b32 v19, 3, v17
    v_add_u32 v19, s37, v19
    global_load_dwordx2 v[20:21], v19, s[24:25]
    """)
    for i in range(8):
        a(f"buffer_load_dwordx2 v[{128+2*i}:{129+2*i}], v18, s[16:19], s29 offen")
        if i < 7:
            a("s_add_u32 s29, s29, 8192")
    for r in range(64, 128):
        a(f"v_mov_b32 v{r}, 0")

    sets = [(32, 36, 40, 44), (48, 52, 56, 60)]
    ACC = [[64, 80], [96, 112]]

    def stage(b):
        a("s_barrier")

        def rd(ks, s):
            if NOCOMP > 1:
                return
            A0, A1, B0, B1 = s
            va = 144 + 8 * b + ks
            vb = 148 + 8 * b + ks
            a(f"ds_read_b128 v[{A0}:{A0+3}], v{va}")
            a(f"ds_read_b128 v[{B0}:{B0+3}], v{vb}")
            a(f"ds_read_b128 v[{B1}:{B1+3}], v{vb} offset:4096")
            a(f"ds_read_b128 v[{A1}:{A1+3}], v{va} offset:4096")

        def mf(s):
            A0, A1, B0, B1 = s
            mfma(a, ACC[0][0], A0, B0)
            mfma(a, ACC[0][1], A0, B1)
            mfma(a, ACC[1][0], A1, B0)
            mfma(a, ACC[1][1], A1, B1)
        compute_stage(a, rd, mf, sets)

    stamp(a, 1, 4, 1)
    a("s_mov_b32 s35, 5")
    a.label("K2_LOOP")
    for b in range(3):
        stage(b)
    a("""
    s_sub_u32 s35, s35, 1
    s_cmp_lg_u32 s35, 0
    s_cbranch_scc1 K2_LOOP
    """)
    stage(0)
    a("s_nop 15")
    a("s_nop 3")
    stamp(a, 2, 4, 1)
    a("""
    s_barrier
    s_lshl_b32 s29, s27, 15
    s_lshl_b32 s37, s26, 14
    s_add_u32 s29, s29, s37
    v_lshlrev_b32 v1, 10, v15
    v_lshl_add_u32 v1, v14, 2, v1
    v_add_u32 v1, s29, v1
    """)
    for rb in range(2):
        for nb in range(2):
            for r in range(16):
                off = (32 * rb + (r & 3) + 8 * (r >> 2)) * 256 + nb * 128
                a(f"ds_write_b32 v1, v{ACC[rb][nb]+r} offset:{off}")
    a("""
    s_lshl_b32 s29, s28, 13
    v_lshlrev_b32 v2, 8, v16
    v_lshl_add_u32 v2, v17, 4, v2
    v_add_u32 v2, s29, v2
    v_lshlrev_b32 v3, 12, v16
    v_lshl_add_u32 v3, v17, 4, v3
    s_lshl_b32 s29, s30, 19
    s_lshl_b32 s37, s28, 17
    s_add_u32 s29, s29, s37
    s_lshl_b32 s37, s31, 8
    s_add_u32 s29, s29, s37
    s_waitcnt vmcnt(0)
    v_lshlrev_b32 v22, 16, v20
    v_and_b32 v23, 0xffff0000, v20
    v_lshlrev_b32 v24, 16, v21
    v_and_b32 v25, 0xffff0000, v21
    """)
    for i in range(8):
        xr = 128 + 2 * i
        S = 32 + 4 * i
        a(f"""
        v_lshlrev_b32 v{S}, 16, v{xr}
        v_and_b32 v{S+1}, 0xffff0000, v{xr}
        v_lshlrev_b32 v{S+2}, 16, v{xr+1}
        v_and_b32 v{S+3}, 0xffff0000, v{xr+1}
        v_mul_f32 v{S}, v{S}, v22
        v_mul_f32 v{S+1}, v{S+1}, v23
        v_mul_f32 v{S+2}, v{S+2}, v24
        v_mul_f32 v{S+3}, v{S+3}, v25
        v_cvt_pk_bf16_f32 v{S}, v{S}, v{S+1}
        v_cvt_pk_bf16_f32 v{S+2}, v{S+2}, v{S+3}
        v_and_b32 v{S+1}, 0xffff0000, v{S}
        v_lshlrev_b32 v{S}, 16, v{S}
        v_and_b32 v{S+3}, 0xffff0000, v{S+2}
        v_lshlrev_b32 v{S+2}, 16, v{S+2}
        """)
    a("""
    s_waitcnt lgkmcnt(0)
    s_barrier
    """)
    for i in range(8):
        a(f"ds_read_b128 v[{64+8*i}:{67+8*i}], v2 offset:{i*1024}")
        a(f"ds_read_b128 v[{68+8*i}:{71+8*i}], v2 offset:{32768 + i*1024}")
    for i in range(8):
        A = 64 + 8 * i
        S = 32 + 4 * i
        a(f"""
        s_waitcnt lgkmcnt({14-2*i})
        v_pk_add_f32 v[{A}:{A+1}], v[{A}:{A+1}], v[{A+4}:{A+5}]
        v_pk_add_f32 v[{A+2}:{A+3}], v[{A+2}:{A+3}], v[{A+6}:{A+7}]
        v_pk_add_f32 v[{A}:{A+1}], v[{A}:{A+1}], v[{S}:{S+1}]
        v_pk_add_f32 v[{A+2}:{A+3}], v[{A+2}:{A+3}], v[{S+2}:{S+3}]
        buffer_store_dwordx4 v[{A}:{A+3}], v3, s[20:23], s29 offen
        s_add_u32 s29, s29, 16384
        """)
    if STAMP:
        a("s_waitcnt vmcnt(0)")
    stamp(a, 3, 4, 1)
    a.label("K2_END")
    a("s_endpgm")


HEADER = """; S5 SSM (GEMM -> diagonal complex scan -> GEMM), generated by work/gen4.py (hand-designed schedule)
; @launch kernel=ssm_k1_kernel grid=(256,1,1) block=(512,1,1) lds={k1lds}
; @launch kernel=ssm_k2_kernel grid=(256,1,1) block=(512,1,1) lds={k2lds}
.amdgcn_target "amdgcn-amd-amdhsa--gfx950"
.text
"""

KD = """
.amdhsa_kernel {name}
  .amdhsa_next_free_vgpr {vgpr}
  .amdhsa_next_free_sgpr 64
  .amdhsa_accum_offset {vgpr}
  .amdhsa_group_segment_fixed_size 0
  .amdhsa_kernarg_size 96
  .amdhsa_user_sgpr_count 2
  .amdhsa_user_sgpr_kernarg_segment_ptr 1
  .amdhsa_system_sgpr_workgroup_id_x 1
  .amdhsa_float_denorm_mode_32 3
  .amdhsa_float_denorm_mode_16_64 3
.end_amdhsa_kernel
"""


def main():
    out = HEADER.format(k1lds=K1_LDS, k2lds=K2_LDS)
    a = Asm()
    a.lines.append(".globl ssm_k1_kernel\n.p2align 8\n.type ssm_k1_kernel,@function")
    gen_k1(a)
    a.lines.append(".globl ssm_k2_kernel\n.p2align 8\n.type ssm_k2_kernel,@function")
    gen_k2(a)
    out += a.text()
    out += '.section .rodata,"a"\n.p2align 6\n'
    out += KD.format(name="ssm_k1_kernel", vgpr=256)
    out += ".p2align 6\n"
    out += KD.format(name="ssm_k2_kernel", vgpr=256 if STAMP else 168)
    path = sys.argv[1] if len(sys.argv) > 1 else "standalone__ssm_conv_s5__prompt.s"
    open(path, "w").write(out)
    print("wrote", path, len(out))


if __name__ == "__main__":
    main()
```

```python
import sys, os


def env(name, default=0):
    return int(os.environ.get(name, str(default)))


NOCOMP, NODMA, STAMP = env("NOCOMP"), env("NODMA"), env("STAMP")
PF1, PFC = env("PF1", 0), env("PFC", 1)
HSC, OSC = os.environ.get("HSC", ""), os.environ.get("OSC", "")

L, D, P = 2048, 1024, 1024
WS_AGG = 8 << 20
WS_STAMP = 16 << 20


class Asm:
    def __init__(self):
        self.lines = []

    def __call__(self, s=""):
        for ln in s.strip("\n").split("\n"):
            t = ln.strip()
            self.lines.append(("    " + t) if t else "")

    def label(self, s):
        self.lines.append(s + ":")

    def text(self):
        return "\n".join(self.lines) + "\n"


def stamp(a, idx, wsreg, kern):
    if not STAMP:
        return
    for nm, off, ins in (("ST", idx, "s_memrealtime"), ("SU", 8 + idx, "s_memtime")):
        a(f"""
        {ins} s[44:45]
        s_lshl_b32 s46, s2, 7
        s_add_u32 s46, s46, {WS_STAMP + off*8 + kern*65536}
        s_waitcnt lgkmcnt(0)
        v_mov_b32 v254, s44
        v_mov_b32 v255, s45
        v_mov_b32 v253, s46
        s_cmp_lg_u32 s28, 0
        s_cbranch_scc1 {nm}_{kern}_{idx}
        v_cmp_eq_u32 vcc, 0, v0
        s_and_saveexec_b64 s[46:47], vcc
        global_store_dwordx2 v253, v[254:255], s[{wsreg}:{wsreg+1}]
        s_mov_b64 exec, s[46:47]
        """)
        a.label(f"{nm}_{kern}_{idx}")


def srd(a, d, nbytes):
    a(f"s_and_b32 s{d+1}, s{d+1}, 0xffff")
    a(f"s_mov_b32 s{d+2}, {nbytes}")
    a(f"s_mov_b32 s{d+3}, 0x00020000")


def mfma(a, acc, A, B):
    if NOCOMP:
        return
    a(f"v_mfma_f32_32x32x16_bf16 v[{acc}:{acc+15}], v[{A}:{A+3}], v[{B}:{B+3}], v[{acc}:{acc+15}]")


LOG2E_HI, LOG2E_LO, LN2 = 0x3fb8aa3b, 0x32a57060, 0x3f317218


def exp_f32(a, dst, src, t0, t1, sA, sB):
    a(f"""
    s_mov_b32 s{sA}, {LOG2E_HI:#x}
    s_mov_b32 s{sB}, {LOG2E_LO:#x}
    v_mul_f32 v{t0}, s{sA}, v{src}
    v_fma_f32 v{t1}, v{src}, s{sA}, -v{t0}
    v_fma_f32 v{t1}, v{src}, s{sB}, v{t1}
    v_exp_f32 v{t0}, v{t0}
    s_mov_b32 s{sA}, {LN2:#x}
    v_mul_f32 v{t1}, s{sA}, v{t1}
    s_nop 0
    v_fma_f32 v{dst}, v{t0}, v{t1}, v{t0}
    """)


def csq(a, dr, di, sr, si, t):
    a(f"""
    v_mul_f32 v{t}, v{si}, v{si}
    v_fma_f32 v{dr}, v{sr}, v{sr}, -v{t}
    v_add_f32 v{t}, v{sr}, v{sr}
    v_mul_f32 v{di}, v{t}, v{si}
    """)


def cfma(a, dr, di, ar, ai, br, bi, cr, ci):
    a(f"""
    v_fma_f32 v{dr}, v{ar}, v{br}, v{cr}
    v_fma_f32 v{di}, v{ar}, v{bi}, v{ci}
    v_fma_f32 v{dr}, -v{ai}, v{bi}, v{dr}
    v_fma_f32 v{di}, v{ai}, v{br}, v{di}
    """)


WG_DECODE = """
    s_and_b32 s26, s2, 7
    s_lshr_b32 s27, s2, 3
    s_and_b32 s30, s26, 3
    s_lshl_b32 s30, s30, 2
    s_and_b32 s31, s27, 3
    s_add_u32 s30, s30, s31            ; s30 = chunk
    s_lshr_b32 s31, s26, 2
    s_lshl_b32 s31, s31, 3
    s_lshr_b32 s27, s27, 2
    s_add_u32 s31, s31, s27
    v_lshrrev_b32 v1, 6, v0
    v_and_b32 v0, 63, v0               ; v0 = lane
    v_readfirstlane_b32 s28, v1        ; s28 = wave
    s_nop 3
"""


def compute_stage(a, rd, mf, sets):
    rd(0, sets[0])
    for ks in range(4):
        if ks < 3:
            rd(ks + 1, sets[(ks + 1) & 1])
            a("s_waitcnt lgkmcnt(4)")
        else:
            a("s_waitcnt lgkmcnt(0)")
        mf(sets[ks & 1])


def dma(a, m0base, m0off, voff, srdr, soff):
    a(f"s_add_u32 m0, s{m0base}, {m0off}")
    a("s_nop 0")
    a(f"buffer_load_dwordx4 v{voff}, s[{srdr}:{srdr+3}], s{soff} offen lds")


K1_STAGE, K1_NB = 32768, 4
K1_AGG = K1_STAGE * K1_NB
K1_LDS = K1_AGG + 2048
K1_PB = 272


def k1_dma_stage(a, b):
    if NODMA:
        return
    base = b * K1_STAGE
    for j in range(4):
        dma(a, 34, base + j * 1024, 1 + j, 4, 32)
    for j in range(2):
        dma(a, 38, base + 16384 + j * 1024, 1 + j, 8, 33)
    for j in range(2):
        dma(a, 38, base + 24576 + j * 1024, 1 + j, 12, 33)
    a("s_add_u32 s32, s32, 128")
    a("s_add_u32 s33, s33, 128")


def gen_k1(a):
    a.label("ssm_k1_kernel")
    a("""
    s_cmp_ge_u32 s2, 256
    s_cbranch_scc1 K1_END
    s_load_dwordx2 s[4:5], s[0:1], 0
    s_load_dwordx2 s[8:9], s[0:1], 24
    s_load_dwordx2 s[12:13], s[0:1], 32
    s_load_dwordx2 s[16:17], s[0:1], 88
    s_load_dwordx2 s[18:19], s[0:1], 80
    s_load_dwordx2 s[20:21], s[0:1], 8
    s_load_dwordx2 s[22:23], s[0:1], 16
    s_load_dwordx2 s[24:25], s[0:1], 56
    s_load_dwordx2 s[40:41], s[0:1], 40
    s_load_dwordx2 s[42:43], s[0:1], 48
    """)
    a(WG_DECODE)
    a("""
    s_cmp_lt_u32 s28, 4
    s_cbranch_scc1 K1_MAIN
    s_sub_u32 s28, s28, 4
    v_lshrrev_b32 v1, 3, v0
    v_lshlrev_b32 v1, 11, v1
    v_lshrrev_b32 v2, 4, v0
    v_xor_b32 v2, v2, v0
    v_and_b32 v2, 7, v2
    v_lshlrev_b32 v2, 4, v2
    v_add_u32 v1, v1, v2
    v_xor_b32 v2, 64, v1
    v_add_u32 v2, 0x4000, v2
    v_add_u32 v3, 0x8000, v1
    v_add_u32 v4, 0x8000, v2
    s_lshl_b32 s32, s30, 18
    s_lshl_b32 s33, s28, 16
    s_add_u32 s32, s32, s33
    s_lshl_b32 s33, s31, 17
    s_lshl_b32 s34, s28, 15
    s_add_u32 s33, s33, s34
    s_lshl_b32 s34, s28, 12
    s_lshl_b32 s38, s28, 11
    s_waitcnt lgkmcnt(0)
    """)
    srd(a, 4, L * D * 2)
    srd(a, 8, P * D * 2)
    srd(a, 12, P * D * 2)
    for b in range(3):
        k1_dma_stage(a, b)
    a("s_mov_b32 s35, 3")
    a.label("K1_PLOOP")
    for b in range(4):
        a("s_waitcnt vmcnt(16)")
        a("s_barrier")
        k1_dma_stage(a, (b + 3) % 4)
    a("""
    s_sub_u32 s35, s35, 1
    s_cmp_lg_u32 s35, 0
    s_cbranch_scc1 K1_PLOOP
    s_waitcnt vmcnt(16)
    s_barrier
    """)
    k1_dma_stage(a, 3)
    a("""
    s_waitcnt vmcnt(16)
    s_barrier
    s_waitcnt vmcnt(8)
    s_barrier
    s_waitcnt vmcnt(0)
    s_barrier
    s_endpgm
    """)

    a.label("K1_MAIN")
    a("""
    s_lshr_b32 s26, s28, 1             ; wr
    s_and_b32 s27, s28, 1              ; wc
    v_and_b32 v7, 31, v0               ; n / m
    v_lshrrev_b32 v8, 5, v0            ; hb
    s_lshl_b32 s29, s31, 6
    s_lshl_b32 s32, s27, 5
    s_add_u32 s29, s29, s32
    v_add_u32 v9, s29, v7
    v_lshlrev_b32 v9, 1, v9
    v_mov_b32 v244, 0
    s_waitcnt lgkmcnt(0)
    s_mov_b32 s48, s4
    s_mov_b32 s49, s5
    """)
    stamp(a, 0, 16, 0)
    a(f"""
    global_load_ushort v10, v9, s[20:21]
    global_load_ushort v11, v9, s[22:23]
    global_load_ushort v12, v9, s[24:25]
    s_cmp_lg_u32 s28, 0
    s_cbranch_scc1 K1_NOCLR
    s_lshl_b32 s29, s31, 14
    s_lshl_b32 s32, s30, 10
    s_add_u32 s29, s29, s32
    s_add_u32 s29, s29, {WS_AGG}
    v_lshlrev_b32 v1, 4, v0
    v_add_u32 v1, s29, v1
    v_mov_b32 v32, 0
    v_mov_b32 v33, 0
    v_mov_b32 v34, 0
    v_mov_b32 v35, 0
    s_lshl_b32 s29, s31, 2
    v_mov_b32 v2, s29
    v_mov_b32 v3, 1
    global_store_dwordx4 v1, v[32:35], s[16:17] sc1
    s_waitcnt vmcnt(0)
    v_cmp_eq_u32 vcc, 0, v0
    s_and_saveexec_b64 s[36:37], vcc
    global_atomic_add v2, v3, s[18:19]
    s_mov_b64 exec, s[36:37]
    """)
    if PFC:
        a("""
        s_lshl_b32 s29, s2, 13
        v_lshlrev_b32 v1, 7, v0
        v_add_u32 v1, s29, v1
        global_load_dword v245, v1, s[40:41]
        global_load_dword v246, v1, s[42:43]
        """)
    a("s_branch K1_CLRD")
    a.label("K1_NOCLR")
    if PF1:
        a("""
        s_lshr_b32 s29, s2, 3
        s_lshl_b32 s29, s29, 4             ; 16*j
        s_and_b32 s32, s2, 3
        s_bfe_u32 s33, s2, 0x10002
        s_cmp_eq_u32 s28, 1
        s_cselect_b32 s32, s32, s33
        s_lshl_b32 s32, s32, 9
        s_add_u32 s29, s29, s32
        v_and_b32 v1, 15, v0
        v_add_u32 v1, s29, v1
        v_lshlrev_b32 v1, 11, v1
        v_lshrrev_b32 v2, 4, v0
        v_lshl_add_u32 v1, v2, 7, v1
        s_cmp_eq_u32 s28, 2
        s_cbranch_scc1 K1_PFB
        s_cmp_eq_u32 s28, 3
        s_cbranch_scc1 K1_PFBI
        """)
        blocks = range(4) if PF1 == 1 else [1]
        a("s_mov_b32 s48, s4")
        a("s_mov_b32 s49, s5")
        a("s_branch K1_PFD")
        a.label("K1_PFB")
        a("s_mov_b32 s48, s8")
        a("s_mov_b32 s49, s9")
        a("s_branch K1_PFD")
        a.label("K1_PFBI")
        a("s_mov_b32 s48, s12")
        a("s_mov_b32 s49, s13")
        a.label("K1_PFD")
        for i in blocks:
            a(f"global_load_dword v{240+i}, v1, s[48:49] offset:{i*512}")
        a("v_add_u32 v244, 1024, v1")
        a(f"s_waitcnt vmcnt({len(blocks)})")
    else:
        a("s_waitcnt vmcnt(0)")
    a.label("K1_CLRD")
    a("""
    v_lshrrev_b32 v1, 2, v7
    v_and_b32 v1, 1, v1
    v_lshlrev_b32 v1, 5, v1
    v_and_b32 v2, 3, v7
    v_add_u32 v1, v1, v2
    v_lshrrev_b32 v2, 3, v7
    v_lshlrev_b32 v2, 2, v2
    v_add_u32 v1, v1, v2
    s_lshl_b32 s29, s26, 6
    v_add_u32 v1, s29, v1
    v_lshrrev_b32 v2, 1, v1
    v_and_b32 v2, 7, v2
    v_xor_b32 v2, v8, v2
    v_lshlrev_b32 v2, 4, v2
    v_lshl_add_u32 v192, v1, 7, v2
    s_lshl_b32 s29, s27, 5
    v_add_u32 v1, s29, v7
    v_lshrrev_b32 v2, 1, v1
    v_and_b32 v2, 7, v2
    v_xor_b32 v2, v8, v2
    v_lshlrev_b32 v2, 4, v2
    v_lshl_add_u32 v196, v1, 7, v2
    v_add_u32 v196, 0x4000, v196
    """)
    for ks in range(1, 4):
        a(f"v_xor_b32 v{192+ks}, {32*ks}, v192")
        a(f"v_xor_b32 v{196+ks}, {32*ks}, v196")
    for i in range(8):
        a(f"v_add_u32 v{200+i}, 0x10000, v{192+i}")
    for r in range(64, 128):
        a(f"v_mov_b32 v{r}, 0")
    a("""
    v_lshlrev_b32 v10, 16, v10
    v_lshlrev_b32 v11, 16, v11
    v_lshlrev_b32 v12, 16, v12
    """)
    exp_f32(a, 13, 12, 14, 15, 36, 37)
    a("""
    v_cvt_pk_bf16_f32 v13, v13, v13
    v_lshlrev_b32 v13, 16, v13
    v_mul_f32 v14, v13, v10
    v_mul_f32 v15, v13, v11
    """)
    exp_f32(a, 16, 14, 17, 18, 36, 37)
    a("""
    v_mul_f32 v17, 0.15915494, v15
    v_fract_f32 v17, v17
    v_sin_f32 v18, v17
    v_cos_f32 v19, v17
    s_nop 0
    v_mul_f32 v20, v16, v19            ; Lr
    v_mul_f32 v21, v16, v18            ; Li
    v_sub_f32 v22, 0, v21              ; -Li
    v_add_f32 v13, -1.0, v20
    v_mul_f32 v14, v13, v10
    v_fma_f32 v14, v21, v11, v14
    v_mul_f32 v15, v21, v10
    v_fma_f32 v15, -v13, v11, v15
    v_mul_f32 v16, v10, v10
    v_fma_f32 v16, v11, v11, v16
    v_rcp_f32 v17, v16
    s_nop 0
    v_fma_f32 v18, -v16, v17, 1.0
    v_fma_f32 v17, v17, v18, v17
    v_mul_f32 v23, v14, v17            ; cr
    v_mul_f32 v24, v15, v17            ; ci
    v_mul_f32 v25, v23, v20
    v_fma_f32 v25, -v24, v21, v25
    v_mul_f32 v26, v23, v21
    v_fma_f32 v26, v24, v20, v26       ; q (im)
    v_add_f32 v208, v23, v23           ; (2cr,2cr)
    v_add_f32 v209, v23, v23
    v_mul_f32 v210, -2.0, v24          ; (-2ci,-2ci)
    v_mul_f32 v211, -2.0, v24
    v_mul_f32 v212, -2.0, v23          ; (-2cr,-2cr)
    v_mul_f32 v213, -2.0, v23
    """)
    csq(a, 13, 14, 20, 21, 17)
    a("""
    v_mov_b32 v214, v13                ; (L2r,L2r)
    v_mov_b32 v215, v13
    v_mov_b32 v216, v14                ; (L2i,L2i)
    v_mov_b32 v217, v14
    v_sub_f32 v218, 0, v14             ; (-L2i,-L2i)
    v_sub_f32 v219, 0, v14
    """)
    csq(a, 15, 16, 13, 14, 17)
    csq(a, 13, 14, 15, 16, 17)
    csq(a, 15, 16, 13, 14, 17)
    csq(a, 27, 28, 15, 16, 17)
    csq(a, 13, 14, 27, 28, 17)
    csq(a, 29, 30, 13, 14, 17)

    ACC = [[64, 80], [96, 112]]
    sets = [(32, 36, 40, 44), (48, 52, 56, 60)]

    def stage(b):
        a("s_barrier")

        def rd(ks, s):
            if NOCOMP > 1:
                return
            A0, A1, B0, B1 = s
            va = (192 if b < 2 else 200) + ks
            vb = (196 if b < 2 else 204) + ks
            base = (b & 1) * K1_STAGE
            a(f"ds_read_b128 v[{A0}:{A0+3}], v{va} offset:{base}")
            a(f"ds_read_b128 v[{B0}:{B0+3}], v{vb} offset:{base}")
            a(f"ds_read_b128 v[{B1}:{B1+3}], v{vb} offset:{base + 8192}")
            a(f"ds_read_b128 v[{A1}:{A1+3}], v{va} offset:{base + 2048}")

        def mf(s):
            A0, A1, B0, B1 = s
            mfma(a, ACC[0][0], A0, B0)
            mfma(a, ACC[0][1], A0, B1)
            mfma(a, ACC[1][0], A1, B0)
            mfma(a, ACC[1][1], A1, B1)
        compute_stage(a, rd, mf, sets)

    stamp(a, 1, 16, 0)
    a("s_mov_b32 s35, 4")
    a.label("K1_LOOP")
    if PF1 == 2:
        a("""
        s_cmp_eq_u32 s28, 0
        s_cbranch_scc1 K1_LPF
        s_cmp_lt_u32 s35, 3
        s_cbranch_scc1 K1_LPF
        global_load_dword v240, v244, s[48:49]
        v_add_u32 v244, 512, v244
        """)
        a.label("K1_LPF")
    for b in range(4):
        stage(b)
    a("""
    s_sub_u32 s35, s35, 1
    s_cmp_lg_u32 s35, 0
    s_cbranch_scc1 K1_LOOP
    s_nop 15
    s_nop 3
    """)
    stamp(a, 2, 16, 0)

    def gr(t):
        return ACC[t // 16][0] + (t % 16)

    def gi(t):
        return ACC[t // 16][1] + (t % 16)

    a("""
    s_lshl_b32 s29, s31, 2
    v_mov_b32 v34, s29
    global_load_dword v35, v34, s[18:19] sc1
    """)
    for t in range(1, 32):
        a(f"v_fmac_f32 v{gr(t)}, v20, v{gr(t-1)}")
        a(f"v_fmac_f32 v{gi(t)}, v20, v{gi(t-1)}")
        a(f"v_fmac_f32 v{gr(t)}, v22, v{gi(t-1)}")
        a(f"v_fmac_f32 v{gi(t)}, v21, v{gr(t-1)}")
    a(f"""
    s_lshl_b32 s29, s27, 5
    v_add_u32 v9, s29, v7
    v_lshlrev_b32 v10, 3, v9
    v_add_u32 v10, {K1_AGG}, v10
    s_lshl_b32 s29, s26, 1
    v_add_u32 v11, s29, v8
    v_lshlrev_b32 v11, 9, v11
    v_add_u32 v11, v11, v10
    ds_write2_b32 v11, v{gr(31)}, v{gi(31)} offset0:0 offset1:1
    s_mov_b32 s35, 0x40000
    """)
    a.label("K1_POLL")
    a("""
    s_waitcnt vmcnt(0)
    v_readfirstlane_b32 s29, v35
    s_nop 3
    s_cmp_ge_u32 s29, 16
    s_cbranch_scc1 K1_POLL_DONE
    s_sub_u32 s35, s35, 1
    s_cmp_eq_u32 s35, 0
    s_cbranch_scc1 K1_POLL_DONE
    s_sleep 2
    global_load_dword v35, v34, s[18:19] sc1
    s_branch K1_POLL
    """)
    a.label("K1_POLL_DONE")
    stamp(a, 3, 16, 0)
    a(f"""
    s_waitcnt lgkmcnt(0)
    s_barrier
    ds_read_b64 v[12:13], v10
    ds_read_b64 v[14:15], v10 offset:512
    ds_read_b64 v[16:17], v10 offset:1024
    ds_read_b64 v[18:19], v10 offset:1536
    s_lshl_b32 s29, s31, 14
    s_add_u32 s29, s29, {WS_AGG}
    v_lshlrev_b32 v9, 4, v9
    v_add_u32 v9, s29, v9
    s_lshl_b32 s29, s30, 10
    v_add_u32 v11, s29, v9
    s_waitcnt lgkmcnt(0)
    """)
    cfma(a, 36, 37, 12, 13, 27, 28, 14, 15)
    cfma(a, 38, 39, 36, 37, 27, 28, 16, 17)
    cfma(a, 32, 34, 38, 39, 27, 28, 18, 19)
    a("""
    v_mov_b32 v33, -1
    v_mov_b32 v35, -1
    s_cmp_lg_u32 s26, 0
    s_cbranch_scc1 K1_NOPUB
    v_cmp_gt_u32 vcc, 32, v0
    s_and_saveexec_b64 s[36:37], vcc
    global_store_dwordx4 v11, v[32:35], s[16:17] sc1
    s_mov_b64 exec, s[36:37]
    """)
    a.label("K1_NOPUB")
    X, PI = 128, 160

    def xr(t):
        return X + t

    def pi_(t):
        return PI + t
    for t in range(0, 32, 2):
        a(f"v_pk_mul_f32 v[{xr(t)}:{xr(t)+1}], v[{gr(t)}:{gr(t)+1}], v[208:209]")
        a(f"v_pk_fma_f32 v[{xr(t)}:{xr(t)+1}], v[{gi(t)}:{gi(t)+1}], v[210:211], v[{xr(t)}:{xr(t)+1}]")
        a(f"v_pk_mul_f32 v[{gi(t)}:{gi(t)+1}], v[{gi(t)}:{gi(t)+1}], v[212:213]")
        a(f"v_pk_fma_f32 v[{gi(t)}:{gi(t)+1}], v[{gr(t)}:{gr(t)+1}], v[210:211], v[{gi(t)}:{gi(t)+1}]")
    a(f"""
    v_mov_b32 v{gr(0)}, 1.0
    v_mov_b32 v{gr(1)}, v20
    v_mov_b32 v{pi_(0)}, 0
    v_mov_b32 v{pi_(1)}, v22
    """)
    for t in range(2, 32, 2):
        pr0, pi0, pr1, pi1 = gr(t - 2), pi_(t - 2), gr(t), pi_(t)
        a(f"v_pk_mul_f32 v[{pr1}:{pr1+1}], v[{pr0}:{pr0+1}], v[214:215]")
        a(f"v_pk_mul_f32 v[{pi1}:{pi1+1}], v[{pi0}:{pi0+1}], v[214:215]")
        a(f"v_pk_fma_f32 v[{pr1}:{pr1+1}], v[{pi0}:{pi0+1}], v[216:217], v[{pr1}:{pr1+1}]")
        a(f"v_pk_fma_f32 v[{pi1}:{pi1+1}], v[{pr0}:{pr0+1}], v[218:219], v[{pi1}:{pi1+1}]")
    a("""
    v_mov_b32 v36, 0
    v_mov_b32 v37, 0
    s_cmp_eq_u32 s30, 0
    s_cbranch_scc1 K1_CARRY_DONE
    v_add_u32 v40, 0x1000, v9
    v_add_u32 v41, 0x2000, v9
    v_add_u32 v42, 0x3000, v9
    s_mov_b32 s35, 0x40000
    """)
    EB = 192
    a.label("K1_GPOLL")
    for cc in range(15):
        if cc > 0:
            a(f"s_cmp_le_u32 s30, {cc}")
            a("s_cbranch_scc1 K1_GP_ISSUED")
        vb = [9, 40, 41, 42][cc // 4]
        a(f"global_load_dwordx4 v[{EB+4*cc}:{EB+4*cc+3}], v{vb}, s[16:17] offset:{(cc%4)*1024} sc1")
    a.label("K1_GP_ISSUED")
    a("s_waitcnt vmcnt(0)")
    a("v_mov_b32 v38, -1")
    for cc in range(15):
        if cc > 0:
            a(f"s_cmp_le_u32 s30, {cc}")
            a("s_cbranch_scc1 K1_GP_CHECKED")
        a(f"v_and_b32 v38, v38, v{EB+4*cc+1}")
        a(f"v_and_b32 v38, v38, v{EB+4*cc+3}")
    a.label("K1_GP_CHECKED")
    a("""
    v_cmp_ne_u32 vcc, -1, v38
    s_cbranch_vccz K1_GP_DONE
    s_sub_u32 s35, s35, 1
    s_cmp_eq_u32 s35, 0
    s_cbranch_scc1 K1_GP_DONE
    s_sleep 1
    s_branch K1_GPOLL
    """)
    a.label("K1_GP_DONE")
    a(f"v_mov_b32 v36, v{EB}")
    a(f"v_mov_b32 v37, v{EB+2}")
    for cc in range(1, 15):
        a(f"s_cmp_le_u32 s30, {cc}")
        a("s_cbranch_scc1 K1_CARRY_DONE")
        cfma(a, 38, 39, 36, 37, 29, 30, EB + 4 * cc, EB + 4 * cc + 2)
        a("v_mov_b32 v36, v38")
        a("v_mov_b32 v37, v39")
    a.label("K1_CARRY_DONE")
    stamp(a, 4, 16, 0)
    cfma(a, 38, 39, 36, 37, 27, 28, 12, 13)
    cfma(a, 40, 41, 38, 39, 27, 28, 14, 15)
    cfma(a, 42, 43, 40, 41, 27, 28, 16, 17)
    a("""
    v_cmp_lt_u32 vcc, 31, v0
    s_cmp_lg_u32 s26, 0
    s_cbranch_scc1 K1_SEL_HI
    v_cndmask_b32 v44, v36, v38, vcc
    v_cndmask_b32 v45, v37, v39, vcc
    s_branch K1_SEL_DONE
    """)
    a.label("K1_SEL_HI")
    a("""
    s_nop 0
    v_cndmask_b32 v44, v40, v42, vcc
    v_cndmask_b32 v45, v41, v43, vcc
    """)
    a.label("K1_SEL_DONE")
    a("""
    v_mul_f32 v46, v25, v44
    v_fma_f32 v46, -v26, v45, v46
    v_mul_f32 v47, v25, v45
    v_fma_f32 v47, v26, v44, v47
    v_add_f32 v12, v46, v46
    v_add_f32 v13, v46, v46
    v_mul_f32 v14, -2.0, v47
    v_mul_f32 v15, -2.0, v47
    v_add_f32 v16, v47, v47
    v_add_f32 v17, v47, v47
    """)
    for j in range(16):
        t = 2 * j
        pr, pi = gr(t), pi_(t)
        a(f"v_pk_fma_f32 v[{xr(t)}:{xr(t)+1}], v[{pr}:{pr+1}], v[12:13], v[{xr(t)}:{xr(t)+1}]")
        a(f"v_pk_fma_f32 v[{gi(t)}:{gi(t)+1}], v[{pr}:{pr+1}], v[14:15], v[{gi(t)}:{gi(t)+1}]")
        a(f"v_pk_fma_f32 v[{xr(t)}:{xr(t)+1}], v[{pi}:{pi+1}], v[16:17], v[{xr(t)}:{xr(t)+1}]")
        a(f"v_pk_fma_f32 v[{gi(t)}:{gi(t)+1}], v[{pi}:{pi+1}], v[12:13], v[{gi(t)}:{gi(t)+1}]")
        a(f"v_cvt_pk_bf16_f32 v{32+j}, v{xr(t)}, v{xr(t)+1}")
        a(f"v_cvt_pk_bf16_f32 v{48+j}, v{gi(t)}, v{gi(t)+1}")
    PB = K1_PB
    a(f"""
    s_lshl_b32 s29, s27, 5
    v_add_u32 v9, s29, v7
    v_mul_u32_u24 v9, {PB}, v9
    s_lshl_b32 s29, s26, 7
    v_lshlrev_b32 v10, 6, v8
    v_add3_u32 v9, v9, v10, s29
    """)
    for i in range(4):
        a(f"ds_write_b128 v9, v[{32+4*i}:{35+4*i}] offset:{16*i}")
    for i in range(4):
        a(f"ds_write_b128 v9, v[{48+4*i}:{51+4*i}] offset:{64*PB + 16*i}")
    a(f"""
    v_lshrrev_b32 v10, 4, v0
    v_lshlrev_b32 v10, 3, v10
    v_lshrrev_b32 v11, 2, v0
    v_and_b32 v11, 3, v11
    v_add_u32 v10, v10, v11
    v_mul_u32_u24 v10, {PB}, v10
    v_and_b32 v11, 3, v0
    v_lshlrev_b32 v11, 3, v11
    s_lshl_b32 s29, s28, 6
    v_add3_u32 v10, v10, v11, s29
    v_and_b32 v11, 15, v0
    v_lshlrev_b32 v11, 12, v11
    v_lshrrev_b32 v12, 4, v0
    v_lshlrev_b32 v12, 4, v12
    v_add_u32 v11, v11, v12
    v_add_u32 v12, 0x10000, v11
    s_lshl_b32 s29, s30, 19
    s_lshl_b32 s35, s28, 17
    s_add_u32 s29, s29, s35
    s_lshl_b32 s35, s31, 7
    s_add_u32 s29, s29, s35
    s_mov_b32 s40, s16
    s_and_b32 s41, s17, 0xffff
    s_mov_b32 s42, {L*2048*2}
    s_mov_b32 s43, 0x00020000
    s_waitcnt lgkmcnt(0)
    s_barrier
    """)
    regs = []
    for j in range(2):
        for im in range(2):
            for q in range(2):
                r0 = 64 + 4 * len(regs)
                off = (64 * im + 32 * q) * PB + 32 * j
                a(f"ds_read_b64_tr_b16 v[{r0}:{r0+1}], v10 offset:{off}")
                a(f"ds_read_b64_tr_b16 v[{r0+2}:{r0+3}], v10 offset:{off + 4*PB}")
                regs.append((r0, j, im, q))
    for n_, (r0, j, im, q) in enumerate(regs):
        a(f"s_waitcnt lgkmcnt({2*(7-n_)})")
        va = 11 if j == 0 else 12
        a(f"buffer_store_dwordx4 v[{r0}:{r0+3}], v{va}, s[40:43], s29 offen offset:{im*2048 + q*64} {HSC}")
    if STAMP:
        a("s_waitcnt vmcnt(0)")
    stamp(a, 5, 16, 0)
    a.label("K1_END")
    a("s_endpgm")


K2_STAGE, K2_NB = 49152, 3
K2_LDS = K2_STAGE * K2_NB


def k2_dma_stage(a, b):
    if NODMA:
        return
    base = b * K2_STAGE
    for j in range(4):
        dma(a, 34, base + j * 1024, 1 + j, 4, 32)
    for j in range(2):
        dma(a, 38, base + 32768 + j * 1024, 5 + j, 8, 33)
    for j in range(4):
        dma(a, 34, base + 16384 + j * 1024, 1 + j, 4, 36)
    for j in range(2):
        dma(a, 38, base + 40960 + j * 1024, 5 + j, 12, 33)
    a("s_add_u32 s32, s32, 128")
    a("s_add_u32 s36, s36, 128")
    a("s_add_u32 s33, s33, 128")


def gen_k2(a):
    a.label("ssm_k2_kernel")
    a("""
    s_cmp_ge_u32 s2, 256
    s_cbranch_scc1 K2_END
    s_load_dwordx2 s[4:5], s[0:1], 88     ; ws (h')
    s_load_dwordx2 s[8:9], s[0:1], 40     ; C_re
    s_load_dwordx2 s[12:13], s[0:1], 48   ; C_im
    s_load_dwordx2 s[16:17], s[0:1], 0    ; x
    s_load_dwordx2 s[20:21], s[0:1], 72   ; out
    s_load_dwordx2 s[24:25], s[0:1], 64   ; Dskip
    """)
    a(WG_DECODE)
    a("""
    s_cmp_lt_u32 s28, 4
    s_cbranch_scc1 K2_MAIN
    s_sub_u32 s28, s28, 4
    v_lshrrev_b32 v7, 4, v0
    v_xor_b32 v7, v7, v0
    v_and_b32 v7, 7, v7
    v_lshlrev_b32 v7, 4, v7
    v_lshrrev_b32 v8, 3, v0
    v_lshl_add_u32 v1, v8, 12, v7
    v_xor_b32 v2, 64, v1
    v_add_u32 v2, 0x8000, v2
    v_add_u32 v3, 0x10000, v1
    v_add_u32 v4, 0x10000, v2
    v_lshl_add_u32 v5, v8, 11, v7
    v_xor_b32 v6, 64, v5
    v_add_u32 v6, 0x4000, v6
    s_lshl_b32 s32, s30, 19
    s_lshl_b32 s33, s28, 17
    s_add_u32 s32, s32, s33
    s_add_u32 s36, s32, 2048
    s_lshl_b32 s33, s31, 17
    s_lshl_b32 s34, s28, 15
    s_add_u32 s33, s33, s34
    s_lshl_b32 s34, s28, 12
    s_lshl_b32 s38, s28, 11
    s_waitcnt lgkmcnt(0)
    """)
    srd(a, 4, L * 2048 * 2)
    srd(a, 8, D * P * 2)
    srd(a, 12, D * P * 2)
    for b in range(2):
        k2_dma_stage(a, b)
    a("s_mov_b32 s35, 4")
    a.label("K2_PLOOP")
    for b in range(3):
        a("s_waitcnt vmcnt(12)")
        a("s_barrier")
        k2_dma_stage(a, (b + 2) % 3)
    a("""
    s_sub_u32 s35, s35, 1
    s_cmp_lg_u32 s35, 0
    s_cbranch_scc1 K2_PLOOP
    """)
    for b in range(2):
        a("s_waitcnt vmcnt(12)")
        a("s_barrier")
        k2_dma_stage(a, (b + 2) % 3)
    a("""
    s_waitcnt vmcnt(12)
    s_barrier
    s_waitcnt vmcnt(0)
    s_barrier
    s_endpgm
    """)
    a.label("K2_MAIN")
    a("""
    s_and_b32 s26, s28, 1              ; wm
    s_lshr_b32 s27, s28, 1             ; kh
    v_and_b32 v14, 31, v0
    v_lshrrev_b32 v15, 5, v0
    v_lshrrev_b32 v7, 1, v14
    v_and_b32 v7, 7, v7
    v_xor_b32 v7, v15, v7
    v_lshlrev_b32 v7, 4, v7
    s_lshl_b32 s29, s27, 14
    s_lshl_b32 s32, s26, 13
    s_add_u32 s29, s29, s32
    v_lshlrev_b32 v8, 7, v14
    v_add3_u32 v144, v8, v7, s29
    s_lshl_b32 s29, s27, 13
    s_add_u32 s29, s29, 32768
    v_add3_u32 v148, v8, v7, s29
    """)
    for ks in range(1, 4):
        a(f"v_xor_b32 v{144+ks}, {32*ks}, v144")
        a(f"v_xor_b32 v{148+ks}, {32*ks}, v148")
    for b in range(1, 3):
        for i in range(8):
            a(f"v_add_u32 v{144+8*b+i}, {b*K2_STAGE}, v{144+i}")
    a("s_waitcnt lgkmcnt(0)")
    srd(a, 16, L * D * 2)
    srd(a, 20, L * D * 4)
    stamp(a, 0, 4, 1)
    a("""
    v_lshrrev_b32 v16, 4, v0
    v_and_b32 v17, 15, v0
    v_lshlrev_b32 v18, 11, v16
    v_lshl_add_u32 v18, v17, 3, v18
    s_lshl_b32 s29, s30, 18
    s_lshl_b32 s37, s28, 16
    s_add_u32 s29, s29, s37
    s_lshl_b32 s37, s31, 7
    s_add_u32 s29, s29, s37
    v_lshlrev_b32 v19, 3, v17
    v_add_u32 v19, s37, v19
    global_load_dwordx2 v[20:21], v19, s[24:25]
    """)
    for i in range(8):
        a(f"buffer_load_dwordx2 v[{128+2*i}:{129+2*i}], v18, s[16:19], s29 offen")
        if i < 7:
            a("s_add_u32 s29, s29, 8192")
    for r in range(64, 128):
        a(f"v_mov_b32 v{r}, 0")

    sets = [(32, 36, 40, 44), (48, 52, 56, 60)]
    ACC = [[64, 80], [96, 112]]

    def stage(b):
        a("s_barrier")

        def rd(ks, s):
            if NOCOMP > 1:
                return
            A0, A1, B0, B1 = s
            va = 144 + 8 * b + ks
            vb = 148 + 8 * b + ks
            a(f"ds_read_b128 v[{A0}:{A0+3}], v{va}")
            a(f"ds_read_b128 v[{B0}:{B0+3}], v{vb}")
            a(f"ds_read_b128 v[{B1}:{B1+3}], v{vb} offset:4096")
            a(f"ds_read_b128 v[{A1}:{A1+3}], v{va} offset:4096")

        def mf(s):
            A0, A1, B0, B1 = s
            mfma(a, ACC[0][0], A0, B0)
            mfma(a, ACC[0][1], A0, B1)
            mfma(a, ACC[1][0], A1, B0)
            mfma(a, ACC[1][1], A1, B1)
        compute_stage(a, rd, mf, sets)

    stamp(a, 1, 4, 1)
    a("s_mov_b32 s35, 5")
    a.label("K2_LOOP")
    for b in range(3):
        stage(b)
    a("""
    s_sub_u32 s35, s35, 1
    s_cmp_lg_u32 s35, 0
    s_cbranch_scc1 K2_LOOP
    """)
    stage(0)
    a("s_nop 15")
    a("s_nop 3")
    stamp(a, 2, 4, 1)
    a("""
    s_barrier
    s_lshl_b32 s29, s27, 15
    s_lshl_b32 s37, s26, 14
    s_add_u32 s29, s29, s37
    v_lshlrev_b32 v1, 10, v15
    v_lshl_add_u32 v1, v14, 2, v1
    v_add_u32 v1, s29, v1
    """)
    for rb in range(2):
        for nb in range(2):
            for r in range(16):
                off = (32 * rb + (r & 3) + 8 * (r >> 2)) * 256 + nb * 128
                a(f"ds_write_b32 v1, v{ACC[rb][nb]+r} offset:{off}")
    a("""
    s_lshl_b32 s29, s28, 13
    v_lshlrev_b32 v2, 8, v16
    v_lshl_add_u32 v2, v17, 4, v2
    v_add_u32 v2, s29, v2
    v_lshlrev_b32 v3, 12, v16
    v_lshl_add_u32 v3, v17, 4, v3
    s_lshl_b32 s29, s30, 19
    s_lshl_b32 s37, s28, 17
    s_add_u32 s29, s29, s37
    s_lshl_b32 s37, s31, 8
    s_add_u32 s29, s29, s37
    s_waitcnt vmcnt(0)
    v_lshlrev_b32 v22, 16, v20
    v_and_b32 v23, 0xffff0000, v20
    v_lshlrev_b32 v24, 16, v21
    v_and_b32 v25, 0xffff0000, v21
    """)
    for i in range(8):
        xr = 128 + 2 * i
        S = 32 + 4 * i
        a(f"""
        v_lshlrev_b32 v{S}, 16, v{xr}
        v_and_b32 v{S+1}, 0xffff0000, v{xr}
        v_lshlrev_b32 v{S+2}, 16, v{xr+1}
        v_and_b32 v{S+3}, 0xffff0000, v{xr+1}
        v_mul_f32 v{S}, v{S}, v22
        v_mul_f32 v{S+1}, v{S+1}, v23
        v_mul_f32 v{S+2}, v{S+2}, v24
        v_mul_f32 v{S+3}, v{S+3}, v25
        v_cvt_pk_bf16_f32 v{S}, v{S}, v{S+1}
        v_cvt_pk_bf16_f32 v{S+2}, v{S+2}, v{S+3}
        v_and_b32 v{S+1}, 0xffff0000, v{S}
        v_lshlrev_b32 v{S}, 16, v{S}
        v_and_b32 v{S+3}, 0xffff0000, v{S+2}
        v_lshlrev_b32 v{S+2}, 16, v{S+2}
        """)
    a("""
    s_waitcnt lgkmcnt(0)
    s_barrier
    """)
    for i in range(8):
        a(f"ds_read_b128 v[{64+8*i}:{67+8*i}], v2 offset:{i*1024}")
        a(f"ds_read_b128 v[{68+8*i}:{71+8*i}], v2 offset:{32768 + i*1024}")
    for i in range(8):
        A = 64 + 8 * i
        S = 32 + 4 * i
        a(f"""
        s_waitcnt lgkmcnt({14-2*i})
        v_pk_add_f32 v[{A}:{A+1}], v[{A}:{A+1}], v[{A+4}:{A+5}]
        v_pk_add_f32 v[{A+2}:{A+3}], v[{A+2}:{A+3}], v[{A+6}:{A+7}]
        v_pk_add_f32 v[{A}:{A+1}], v[{A}:{A+1}], v[{S}:{S+1}]
        v_pk_add_f32 v[{A+2}:{A+3}], v[{A+2}:{A+3}], v[{S+2}:{S+3}]
        buffer_store_dwordx4 v[{A}:{A+3}], v3, s[20:23], s29 offen {OSC}
        s_add_u32 s29, s29, 16384
        """)
    if STAMP:
        a("s_waitcnt vmcnt(0)")
    stamp(a, 3, 4, 1)
    a.label("K2_END")
    a("s_endpgm")


HEADER = """; S5 SSM (GEMM -> diagonal complex scan -> GEMM), generated by work/gen4.py (hand-designed schedule)
; @launch kernel=ssm_k1_kernel grid=(256,1,1) block=(512,1,1) lds={k1lds}
; @launch kernel=ssm_k2_kernel grid=(256,1,1) block=(512,1,1) lds={k2lds}
.amdgcn_target "amdgcn-amd-amdhsa--gfx950"
.text
"""

KD = """
.amdhsa_kernel {name}
  .amdhsa_next_free_vgpr {vgpr}
  .amdhsa_next_free_sgpr 64
  .amdhsa_accum_offset {vgpr}
  .amdhsa_group_segment_fixed_size 0
  .amdhsa_kernarg_size 96
  .amdhsa_user_sgpr_count 2
  .amdhsa_user_sgpr_kernarg_segment_ptr 1
  .amdhsa_system_sgpr_workgroup_id_x 1
  .amdhsa_float_denorm_mode_32 3
  .amdhsa_float_denorm_mode_16_64 3
.end_amdhsa_kernel
"""


def main():
    out = HEADER.format(k1lds=K1_LDS, k2lds=K2_LDS)
    a = Asm()
    a.lines.append(".globl ssm_k1_kernel\n.p2align 8\n.type ssm_k1_kernel,@function")
    gen_k1(a)
    a.lines.append(".globl ssm_k2_kernel\n.p2align 8\n.type ssm_k2_kernel,@function")
    gen_k2(a)
    out += a.text()
    out += '.section .rodata,"a"\n.p2align 6\n'
    out += KD.format(name="ssm_k1_kernel", vgpr=256)
    out += ".p2align 6\n"
    out += KD.format(name="ssm_k2_kernel", vgpr=256 if STAMP else 168)
    path = sys.argv[1] if len(sys.argv) > 1 else "standalone__ssm_conv_s5__prompt.s"
    open(path, "w").write(out)
    print("wrote", path, len(out))


if __name__ == "__main__":
    main()
```

```python
import sys, os


def env(name, default=0):
    return int(os.environ.get(name, str(default)))


NOCOMP, NODMA, STAMP = env("NOCOMP"), env("NODMA"), env("STAMP")
PF1, PFC = env("PF1", 0), env("PFC", 1)
HSC, OSC = os.environ.get("HSC", "sc1"), os.environ.get("OSC", "sc1")
K2M16 = env("K2M16", 1)

L, D, P = 2048, 1024, 1024
WS_AGG = 8 << 20
WS_STAMP = 16 << 20


class Asm:
    def __init__(self):
        self.lines = []

    def __call__(self, s=""):
        for ln in s.strip("\n").split("\n"):
            t = ln.strip()
            self.lines.append(("    " + t) if t else "")

    def label(self, s):
        self.lines.append(s + ":")

    def text(self):
        return "\n".join(self.lines) + "\n"


def stamp(a, idx, wsreg, kern):
    if not STAMP:
        return
    for nm, off, ins in (("ST", idx, "s_memrealtime"), ("SU", 8 + idx, "s_memtime")):
        a(f"""
        {ins} s[44:45]
        s_lshl_b32 s46, s2, 7
        s_add_u32 s46, s46, {WS_STAMP + off*8 + kern*65536}
        s_waitcnt lgkmcnt(0)
        v_mov_b32 v254, s44
        v_mov_b32 v255, s45
        v_mov_b32 v253, s46
        s_cmp_lg_u32 s28, 0
        s_cbranch_scc1 {nm}_{kern}_{idx}
        v_cmp_eq_u32 vcc, 0, v0
        s_and_saveexec_b64 s[46:47], vcc
        global_store_dwordx2 v253, v[254:255], s[{wsreg}:{wsreg+1}]
        s_mov_b64 exec, s[46:47]
        """)
        a.label(f"{nm}_{kern}_{idx}")


def srd(a, d, nbytes):
    a(f"s_and_b32 s{d+1}, s{d+1}, 0xffff")
    a(f"s_mov_b32 s{d+2}, {nbytes}")
    a(f"s_mov_b32 s{d+3}, 0x00020000")


def mfma(a, acc, A, B):
    if NOCOMP:
        return
    a(f"v_mfma_f32_32x32x16_bf16 v[{acc}:{acc+15}], v[{A}:{A+3}], v[{B}:{B+3}], v[{acc}:{acc+15}]")


LOG2E_HI, LOG2E_LO, LN2 = 0x3fb8aa3b, 0x32a57060, 0x3f317218


def exp_f32(a, dst, src, t0, t1, sA, sB):
    a(f"""
    s_mov_b32 s{sA}, {LOG2E_HI:#x}
    s_mov_b32 s{sB}, {LOG2E_LO:#x}
    v_mul_f32 v{t0}, s{sA}, v{src}
    v_fma_f32 v{t1}, v{src}, s{sA}, -v{t0}
    v_fma_f32 v{t1}, v{src}, s{sB}, v{t1}
    v_exp_f32 v{t0}, v{t0}
    s_mov_b32 s{sA}, {LN2:#x}
    v_mul_f32 v{t1}, s{sA}, v{t1}
    s_nop 0
    v_fma_f32 v{dst}, v{t0}, v{t1}, v{t0}
    """)


def csq(a, dr, di, sr, si, t):
    a(f"""
    v_mul_f32 v{t}, v{si}, v{si}
    v_fma_f32 v{dr}, v{sr}, v{sr}, -v{t}
    v_add_f32 v{t}, v{sr}, v{sr}
    v_mul_f32 v{di}, v{t}, v{si}
    """)


def cfma(a, dr, di, ar, ai, br, bi, cr, ci):
    a(f"""
    v_fma_f32 v{dr}, v{ar}, v{br}, v{cr}
    v_fma_f32 v{di}, v{ar}, v{bi}, v{ci}
    v_fma_f32 v{dr}, -v{ai}, v{bi}, v{dr}
    v_fma_f32 v{di}, v{ai}, v{br}, v{di}
    """)


WG_DECODE = """
    s_and_b32 s26, s2, 7
    s_lshr_b32 s27, s2, 3
    s_and_b32 s30, s26, 3
    s_lshl_b32 s30, s30, 2
    s_and_b32 s31, s27, 3
    s_add_u32 s30, s30, s31            ; s30 = chunk
    s_lshr_b32 s31, s26, 2
    s_lshl_b32 s31, s31, 3
    s_lshr_b32 s27, s27, 2
    s_add_u32 s31, s31, s27
    v_lshrrev_b32 v1, 6, v0
    v_and_b32 v0, 63, v0               ; v0 = lane
    v_readfirstlane_b32 s28, v1        ; s28 = wave
    s_nop 3
"""


def compute_stage(a, rd, mf, sets):
    rd(0, sets[0])
    for ks in range(4):
        if ks < 3:
            rd(ks + 1, sets[(ks + 1) & 1])
            a("s_waitcnt lgkmcnt(4)")
        else:
            a("s_waitcnt lgkmcnt(0)")
        mf(sets[ks & 1])


def dma(a, m0base, m0off, voff, srdr, soff):
    a(f"s_add_u32 m0, s{m0base}, {m0off}")
    a("s_nop 0")
    a(f"buffer_load_dwordx4 v{voff}, s[{srdr}:{srdr+3}], s{soff} offen lds")


K1_STAGE, K1_NB = 32768, 4
K1_AGG = K1_STAGE * K1_NB
K1_LDS = K1_AGG + 2048
K1_PB = 272


def k1_dma_stage(a, b):
    if NODMA:
        return
    base = b * K1_STAGE
    for j in range(4):
        dma(a, 34, base + j * 1024, 1 + j, 4, 32)
    for j in range(2):
        dma(a, 38, base + 16384 + j * 1024, 1 + j, 8, 33)
    for j in range(2):
        dma(a, 38, base + 24576 + j * 1024, 1 + j, 12, 33)
    a("s_add_u32 s32, s32, 128")
    a("s_add_u32 s33, s33, 128")


def gen_k1(a):
    a.label("ssm_k1_kernel")
    a("""
    s_cmp_ge_u32 s2, 256
    s_cbranch_scc1 K1_END
    s_load_dwordx2 s[4:5], s[0:1], 0
    s_load_dwordx2 s[8:9], s[0:1], 24
    s_load_dwordx2 s[12:13], s[0:1], 32
    s_load_dwordx2 s[16:17], s[0:1], 88
    s_load_dwordx2 s[18:19], s[0:1], 80
    s_load_dwordx2 s[20:21], s[0:1], 8
    s_load_dwordx2 s[22:23], s[0:1], 16
    s_load_dwordx2 s[24:25], s[0:1], 56
    s_load_dwordx2 s[40:41], s[0:1], 40
    s_load_dwordx2 s[42:43], s[0:1], 48
    """)
    a(WG_DECODE)
    a("""
    s_cmp_lt_u32 s28, 4
    s_cbranch_scc1 K1_MAIN
    s_sub_u32 s28, s28, 4
    v_lshrrev_b32 v1, 3, v0
    v_lshlrev_b32 v1, 11, v1
    v_lshrrev_b32 v2, 4, v0
    v_xor_b32 v2, v2, v0
    v_and_b32 v2, 7, v2
    v_lshlrev_b32 v2, 4, v2
    v_add_u32 v1, v1, v2
    v_xor_b32 v2, 64, v1
    v_add_u32 v2, 0x4000, v2
    v_add_u32 v3, 0x8000, v1
    v_add_u32 v4, 0x8000, v2
    s_lshl_b32 s32, s30, 18
    s_lshl_b32 s33, s28, 16
    s_add_u32 s32, s32, s33
    s_lshl_b32 s33, s31, 17
    s_lshl_b32 s34, s28, 15
    s_add_u32 s33, s33, s34
    s_lshl_b32 s34, s28, 12
    s_lshl_b32 s38, s28, 11
    s_waitcnt lgkmcnt(0)
    """)
    srd(a, 4, L * D * 2)
    srd(a, 8, P * D * 2)
    srd(a, 12, P * D * 2)
    for b in range(3):
        k1_dma_stage(a, b)
    a("s_mov_b32 s35, 3")
    a.label("K1_PLOOP")
    for b in range(4):
        a("s_waitcnt vmcnt(16)")
        a("s_barrier")
        k1_dma_stage(a, (b + 3) % 4)
    a("""
    s_sub_u32 s35, s35, 1
    s_cmp_lg_u32 s35, 0
    s_cbranch_scc1 K1_PLOOP
    s_waitcnt vmcnt(16)
    s_barrier
    """)
    k1_dma_stage(a, 3)
    a("""
    s_waitcnt vmcnt(16)
    s_barrier
    s_waitcnt vmcnt(8)
    s_barrier
    s_waitcnt vmcnt(0)
    s_barrier
    s_endpgm
    """)

    a.label("K1_MAIN")
    a("""
    s_lshr_b32 s26, s28, 1             ; wr
    s_and_b32 s27, s28, 1              ; wc
    v_and_b32 v7, 31, v0               ; n / m
    v_lshrrev_b32 v8, 5, v0            ; hb
    s_lshl_b32 s29, s31, 6
    s_lshl_b32 s32, s27, 5
    s_add_u32 s29, s29, s32
    v_add_u32 v9, s29, v7
    v_lshlrev_b32 v9, 1, v9
    v_mov_b32 v244, 0
    s_waitcnt lgkmcnt(0)
    s_mov_b32 s48, s4
    s_mov_b32 s49, s5
    """)
    stamp(a, 0, 16, 0)
    a(f"""
    global_load_ushort v10, v9, s[20:21]
    global_load_ushort v11, v9, s[22:23]
    global_load_ushort v12, v9, s[24:25]
    s_cmp_lg_u32 s28, 0
    s_cbranch_scc1 K1_NOCLR
    s_lshl_b32 s29, s31, 14
    s_lshl_b32 s32, s30, 10
    s_add_u32 s29, s29, s32
    s_add_u32 s29, s29, {WS_AGG}
    v_lshlrev_b32 v1, 4, v0
    v_add_u32 v1, s29, v1
    v_mov_b32 v32, 0
    v_mov_b32 v33, 0
    v_mov_b32 v34, 0
    v_mov_b32 v35, 0
    s_lshl_b32 s29, s31, 2
    v_mov_b32 v2, s29
    v_mov_b32 v3, 1
    global_store_dwordx4 v1, v[32:35], s[16:17] sc1
    s_waitcnt vmcnt(0)
    v_cmp_eq_u32 vcc, 0, v0
    s_and_saveexec_b64 s[36:37], vcc
    global_atomic_add v2, v3, s[18:19]
    s_mov_b64 exec, s[36:37]
    """)
    if PFC:
        a("""
        s_lshl_b32 s29, s2, 13
        v_lshlrev_b32 v1, 7, v0
        v_add_u32 v1, s29, v1
        global_load_dword v245, v1, s[40:41]
        global_load_dword v246, v1, s[42:43]
        """)
    a("s_branch K1_CLRD")
    a.label("K1_NOCLR")
    if PF1 == 3:
        a("""
        v_lshlrev_b32 v1, 7, v0
        s_cmp_eq_u32 s28, 1
        s_cbranch_scc0 K1_PF3B
        s_lshl_b32 s29, s2, 14
        v_add_u32 v1, s29, v1
        v_add_u32 v2, 0x2000, v1
        global_load_dword v240, v1, s[4:5]
        global_load_dword v241, v2, s[4:5]
        s_waitcnt vmcnt(2)
        s_branch K1_CLRD
        """)
        a.label("K1_PF3B")
        a("""
        s_lshl_b32 s29, s2, 13
        v_add_u32 v1, s29, v1
        s_cmp_eq_u32 s28, 2
        s_cbranch_scc0 K1_PF3C
        global_load_dword v240, v1, s[8:9]
        s_waitcnt vmcnt(1)
        s_branch K1_CLRD
        """)
        a.label("K1_PF3C")
        a("""
        global_load_dword v240, v1, s[12:13]
        s_waitcnt vmcnt(1)
        """)
    elif PF1:
        a("""
        s_lshr_b32 s29, s2, 3
        s_lshl_b32 s29, s29, 4             ; 16*j
        s_and_b32 s32, s2, 3
        s_bfe_u32 s33, s2, 0x10002
        s_cmp_eq_u32 s28, 1
        s_cselect_b32 s32, s32, s33
        s_lshl_b32 s32, s32, 9
        s_add_u32 s29, s29, s32
        v_and_b32 v1, 15, v0
        v_add_u32 v1, s29, v1
        v_lshlrev_b32 v1, 11, v1
        v_lshrrev_b32 v2, 4, v0
        v_lshl_add_u32 v1, v2, 7, v1
        s_cmp_eq_u32 s28, 2
        s_cbranch_scc1 K1_PFB
        s_cmp_eq_u32 s28, 3
        s_cbranch_scc1 K1_PFBI
        """)
        blocks = range(4) if PF1 == 1 else [1]
        a("s_mov_b32 s48, s4")
        a("s_mov_b32 s49, s5")
        a("s_branch K1_PFD")
        a.label("K1_PFB")
        a("s_mov_b32 s48, s8")
        a("s_mov_b32 s49, s9")
        a("s_branch K1_PFD")
        a.label("K1_PFBI")
        a("s_mov_b32 s48, s12")
        a("s_mov_b32 s49, s13")
        a.label("K1_PFD")
        for i in blocks:
            a(f"global_load_dword v{240+i}, v1, s[48:49] offset:{i*512}")
        a("v_add_u32 v244, 1024, v1")
        a(f"s_waitcnt vmcnt({len(blocks)})")
    else:
        a("s_waitcnt vmcnt(0)")
    a.label("K1_CLRD")
    a("""
    v_lshrrev_b32 v1, 2, v7
    v_and_b32 v1, 1, v1
    v_lshlrev_b32 v1, 5, v1
    v_and_b32 v2, 3, v7
    v_add_u32 v1, v1, v2
    v_lshrrev_b32 v2, 3, v7
    v_lshlrev_b32 v2, 2, v2
    v_add_u32 v1, v1, v2
    s_lshl_b32 s29, s26, 6
    v_add_u32 v1, s29, v1
    v_lshrrev_b32 v2, 1, v1
    v_and_b32 v2, 7, v2
    v_xor_b32 v2, v8, v2
    v_lshlrev_b32 v2, 4, v2
    v_lshl_add_u32 v192, v1, 7, v2
    s_lshl_b32 s29, s27, 5
    v_add_u32 v1, s29, v7
    v_lshrrev_b32 v2, 1, v1
    v_and_b32 v2, 7, v2
    v_xor_b32 v2, v8, v2
    v_lshlrev_b32 v2, 4, v2
    v_lshl_add_u32 v196, v1, 7, v2
    v_add_u32 v196, 0x4000, v196
    """)
    for ks in range(1, 4):
        a(f"v_xor_b32 v{192+ks}, {32*ks}, v192")
        a(f"v_xor_b32 v{196+ks}, {32*ks}, v196")
    for i in range(8):
        a(f"v_add_u32 v{200+i}, 0x10000, v{192+i}")
    for r in range(64, 128):
        a(f"v_mov_b32 v{r}, 0")
    a("""
    v_lshlrev_b32 v10, 16, v10
    v_lshlrev_b32 v11, 16, v11
    v_lshlrev_b32 v12, 16, v12
    """)
    exp_f32(a, 13, 12, 14, 15, 36, 37)
    a("""
    v_cvt_pk_bf16_f32 v13, v13, v13
    v_lshlrev_b32 v13, 16, v13
    v_mul_f32 v14, v13, v10
    v_mul_f32 v15, v13, v11
    """)
    exp_f32(a, 16, 14, 17, 18, 36, 37)
    a("""
    v_mul_f32 v17, 0.15915494, v15
    v_fract_f32 v17, v17
    v_sin_f32 v18, v17
    v_cos_f32 v19, v17
    s_nop 0
    v_mul_f32 v20, v16, v19            ; Lr
    v_mul_f32 v21, v16, v18            ; Li
    v_sub_f32 v22, 0, v21              ; -Li
    v_add_f32 v13, -1.0, v20
    v_mul_f32 v14, v13, v10
    v_fma_f32 v14, v21, v11, v14
    v_mul_f32 v15, v21, v10
    v_fma_f32 v15, -v13, v11, v15
    v_mul_f32 v16, v10, v10
    v_fma_f32 v16, v11, v11, v16
    v_rcp_f32 v17, v16
    s_nop 0
    v_fma_f32 v18, -v16, v17, 1.0
    v_fma_f32 v17, v17, v18, v17
    v_mul_f32 v23, v14, v17            ; cr
    v_mul_f32 v24, v15, v17            ; ci
    v_mul_f32 v25, v23, v20
    v_fma_f32 v25, -v24, v21, v25
    v_mul_f32 v26, v23, v21
    v_fma_f32 v26, v24, v20, v26       ; q (im)
    v_add_f32 v208, v23, v23           ; (2cr,2cr)
    v_add_f32 v209, v23, v23
    v_mul_f32 v210, -2.0, v24          ; (-2ci,-2ci)
    v_mul_f32 v211, -2.0, v24
    v_mul_f32 v212, -2.0, v23          ; (-2cr,-2cr)
    v_mul_f32 v213, -2.0, v23
    """)
    csq(a, 13, 14, 20, 21, 17)
    a("""
    v_mov_b32 v214, v13                ; (L2r,L2r)
    v_mov_b32 v215, v13
    v_mov_b32 v216, v14                ; (L2i,L2i)
    v_mov_b32 v217, v14
    v_sub_f32 v218, 0, v14             ; (-L2i,-L2i)
    v_sub_f32 v219, 0, v14
    """)
    csq(a, 15, 16, 13, 14, 17)
    csq(a, 13, 14, 15, 16, 17)
    csq(a, 15, 16, 13, 14, 17)
    csq(a, 27, 28, 15, 16, 17)
    csq(a, 13, 14, 27, 28, 17)
    csq(a, 29, 30, 13, 14, 17)

    ACC = [[64, 80], [96, 112]]
    sets = [(32, 36, 40, 44), (48, 52, 56, 60)]

    def stage(b):
        a("s_barrier")

        def rd(ks, s):
            if NOCOMP > 1:
                return
            A0, A1, B0, B1 = s
            va = (192 if b < 2 else 200) + ks
            vb = (196 if b < 2 else 204) + ks
            base = (b & 1) * K1_STAGE
            a(f"ds_read_b128 v[{A0}:{A0+3}], v{va} offset:{base}")
            a(f"ds_read_b128 v[{B0}:{B0+3}], v{vb} offset:{base}")
            a(f"ds_read_b128 v[{B1}:{B1+3}], v{vb} offset:{base + 8192}")
            a(f"ds_read_b128 v[{A1}:{A1+3}], v{va} offset:{base + 2048}")

        def mf(s):
            A0, A1, B0, B1 = s
            mfma(a, ACC[0][0], A0, B0)
            mfma(a, ACC[0][1], A0, B1)
            mfma(a, ACC[1][0], A1, B0)
            mfma(a, ACC[1][1], A1, B1)
        compute_stage(a, rd, mf, sets)

    stamp(a, 1, 16, 0)
    a("s_mov_b32 s35, 4")
    a.label("K1_LOOP")
    if PF1 == 2:
        a("""
        s_cmp_eq_u32 s28, 0
        s_cbranch_scc1 K1_LPF
        s_cmp_lt_u32 s35, 3
        s_cbranch_scc1 K1_LPF
        global_load_dword v240, v244, s[48:49]
        v_add_u32 v244, 512, v244
        """)
        a.label("K1_LPF")
    for b in range(4):
        stage(b)
    a("""
    s_sub_u32 s35, s35, 1
    s_cmp_lg_u32 s35, 0
    s_cbranch_scc1 K1_LOOP
    s_nop 15
    s_nop 3
    """)
    stamp(a, 2, 16, 0)

    def gr(t):
        return ACC[t // 16][0] + (t % 16)

    def gi(t):
        return ACC[t // 16][1] + (t % 16)

    a("""
    s_lshl_b32 s29, s31, 2
    v_mov_b32 v34, s29
    global_load_dword v35, v34, s[18:19] sc1
    """)
    for t in range(1, 32):
        a(f"v_fmac_f32 v{gr(t)}, v20, v{gr(t-1)}")
        a(f"v_fmac_f32 v{gi(t)}, v20, v{gi(t-1)}")
        a(f"v_fmac_f32 v{gr(t)}, v22, v{gi(t-1)}")
        a(f"v_fmac_f32 v{gi(t)}, v21, v{gr(t-1)}")
    a(f"""
    s_lshl_b32 s29, s27, 5
    v_add_u32 v9, s29, v7
    v_lshlrev_b32 v10, 3, v9
    v_add_u32 v10, {K1_AGG}, v10
    s_lshl_b32 s29, s26, 1
    v_add_u32 v11, s29, v8
    v_lshlrev_b32 v11, 9, v11
    v_add_u32 v11, v11, v10
    ds_write2_b32 v11, v{gr(31)}, v{gi(31)} offset0:0 offset1:1
    s_mov_b32 s35, 0x40000
    """)
    a.label("K1_POLL")
    a("""
    s_waitcnt vmcnt(0)
    v_readfirstlane_b32 s29, v35
    s_nop 3
    s_cmp_ge_u32 s29, 16
    s_cbranch_scc1 K1_POLL_DONE
    s_sub_u32 s35, s35, 1
    s_cmp_eq_u32 s35, 0
    s_cbranch_scc1 K1_POLL_DONE
    s_sleep 2
    global_load_dword v35, v34, s[18:19] sc1
    s_branch K1_POLL
    """)
    a.label("K1_POLL_DONE")
    stamp(a, 3, 16, 0)
    a(f"""
    s_waitcnt lgkmcnt(0)
    s_barrier
    ds_read_b64 v[12:13], v10
    ds_read_b64 v[14:15], v10 offset:512
    ds_read_b64 v[16:17], v10 offset:1024
    ds_read_b64 v[18:19], v10 offset:1536
    s_lshl_b32 s29, s31, 14
    s_add_u32 s29, s29, {WS_AGG}
    v_lshlrev_b32 v9, 4, v9
    v_add_u32 v9, s29, v9
    s_lshl_b32 s29, s30, 10
    v_add_u32 v11, s29, v9
    s_waitcnt lgkmcnt(0)
    """)
    cfma(a, 36, 37, 12, 13, 27, 28, 14, 15)
    cfma(a, 38, 39, 36, 37, 27, 28, 16, 17)
    cfma(a, 32, 34, 38, 39, 27, 28, 18, 19)
    a("""
    v_mov_b32 v33, -1
    v_mov_b32 v35, -1
    s_cmp_lg_u32 s26, 0
    s_cbranch_scc1 K1_NOPUB
    v_cmp_gt_u32 vcc, 32, v0
    s_and_saveexec_b64 s[36:37], vcc
    global_store_dwordx4 v11, v[32:35], s[16:17] sc1
    s_mov_b64 exec, s[36:37]
    """)
    a.label("K1_NOPUB")
    X, PI = 128, 160

    def xr(t):
        return X + t

    def pi_(t):
        return PI + t
    for t in range(0, 32, 2):
        a(f"v_pk_mul_f32 v[{xr(t)}:{xr(t)+1}], v[{gr(t)}:{gr(t)+1}], v[208:209]")
        a(f"v_pk_fma_f32 v[{xr(t)}:{xr(t)+1}], v[{gi(t)}:{gi(t)+1}], v[210:211], v[{xr(t)}:{xr(t)+1}]")
        a(f"v_pk_mul_f32 v[{gi(t)}:{gi(t)+1}], v[{gi(t)}:{gi(t)+1}], v[212:213]")
        a(f"v_pk_fma_f32 v[{gi(t)}:{gi(t)+1}], v[{gr(t)}:{gr(t)+1}], v[210:211], v[{gi(t)}:{gi(t)+1}]")
    a(f"""
    v_mov_b32 v{gr(0)}, 1.0
    v_mov_b32 v{gr(1)}, v20
    v_mov_b32 v{pi_(0)}, 0
    v_mov_b32 v{pi_(1)}, v22
    """)
    for t in range(2, 32, 2):
        pr0, pi0, pr1, pi1 = gr(t - 2), pi_(t - 2), gr(t), pi_(t)
        a(f"v_pk_mul_f32 v[{pr1}:{pr1+1}], v[{pr0}:{pr0+1}], v[214:215]")
        a(f"v_pk_mul_f32 v[{pi1}:{pi1+1}], v[{pi0}:{pi0+1}], v[214:215]")
        a(f"v_pk_fma_f32 v[{pr1}:{pr1+1}], v[{pi0}:{pi0+1}], v[216:217], v[{pr1}:{pr1+1}]")
        a(f"v_pk_fma_f32 v[{pi1}:{pi1+1}], v[{pr0}:{pr0+1}], v[218:219], v[{pi1}:{pi1+1}]")
    a("""
    v_mov_b32 v36, 0
    v_mov_b32 v37, 0
    s_cmp_eq_u32 s30, 0
    s_cbranch_scc1 K1_CARRY_DONE
    v_add_u32 v40, 0x1000, v9
    v_add_u32 v41, 0x2000, v9
    v_add_u32 v42, 0x3000, v9
    s_mov_b32 s35, 0x40000
    """)
    EB = 192
    a.label("K1_GPOLL")
    for cc in range(15):
        if cc > 0:
            a(f"s_cmp_le_u32 s30, {cc}")
            a("s_cbranch_scc1 K1_GP_ISSUED")
        vb = [9, 40, 41, 42][cc // 4]
        a(f"global_load_dwordx4 v[{EB+4*cc}:{EB+4*cc+3}], v{vb}, s[16:17] offset:{(cc%4)*1024} sc1")
    a.label("K1_GP_ISSUED")
    a("s_waitcnt vmcnt(0)")
    a("v_mov_b32 v38, -1")
    for cc in range(15):
        if cc > 0:
            a(f"s_cmp_le_u32 s30, {cc}")
            a("s_cbranch_scc1 K1_GP_CHECKED")
        a(f"v_and_b32 v38, v38, v{EB+4*cc+1}")
        a(f"v_and_b32 v38, v38, v{EB+4*cc+3}")
    a.label("K1_GP_CHECKED")
    a("""
    v_cmp_ne_u32 vcc, -1, v38
    s_cbranch_vccz K1_GP_DONE
    s_sub_u32 s35, s35, 1
    s_cmp_eq_u32 s35, 0
    s_cbranch_scc1 K1_GP_DONE
    s_sleep 1
    s_branch K1_GPOLL
    """)
    a.label("K1_GP_DONE")
    a(f"v_mov_b32 v36, v{EB}")
    a(f"v_mov_b32 v37, v{EB+2}")
    for cc in range(1, 15):
        a(f"s_cmp_le_u32 s30, {cc}")
        a("s_cbranch_scc1 K1_CARRY_DONE")
        cfma(a, 38, 39, 36, 37, 29, 30, EB + 4 * cc, EB + 4 * cc + 2)
        a("v_mov_b32 v36, v38")
        a("v_mov_b32 v37, v39")
    a.label("K1_CARRY_DONE")
    stamp(a, 4, 16, 0)
    cfma(a, 38, 39, 36, 37, 27, 28, 12, 13)
    cfma(a, 40, 41, 38, 39, 27, 28, 14, 15)
    cfma(a, 42, 43, 40, 41, 27, 28, 16, 17)
    a("""
    v_cmp_lt_u32 vcc, 31, v0
    s_cmp_lg_u32 s26, 0
    s_cbranch_scc1 K1_SEL_HI
    v_cndmask_b32 v44, v36, v38, vcc
    v_cndmask_b32 v45, v37, v39, vcc
    s_branch K1_SEL_DONE
    """)
    a.label("K1_SEL_HI")
    a("""
    s_nop 0
    v_cndmask_b32 v44, v40, v42, vcc
    v_cndmask_b32 v45, v41, v43, vcc
    """)
    a.label("K1_SEL_DONE")
    a("""
    v_mul_f32 v46, v25, v44
    v_fma_f32 v46, -v26, v45, v46
    v_mul_f32 v47, v25, v45
    v_fma_f32 v47, v26, v44, v47
    v_add_f32 v12, v46, v46
    v_add_f32 v13, v46, v46
    v_mul_f32 v14, -2.0, v47
    v_mul_f32 v15, -2.0, v47
    v_add_f32 v16, v47, v47
    v_add_f32 v17, v47, v47
    """)
    for j in range(16):
        t = 2 * j
        pr, pi = gr(t), pi_(t)
        a(f"v_pk_fma_f32 v[{xr(t)}:{xr(t)+1}], v[{pr}:{pr+1}], v[12:13], v[{xr(t)}:{xr(t)+1}]")
        a(f"v_pk_fma_f32 v[{gi(t)}:{gi(t)+1}], v[{pr}:{pr+1}], v[14:15], v[{gi(t)}:{gi(t)+1}]")
        a(f"v_pk_fma_f32 v[{xr(t)}:{xr(t)+1}], v[{pi}:{pi+1}], v[16:17], v[{xr(t)}:{xr(t)+1}]")
        a(f"v_pk_fma_f32 v[{gi(t)}:{gi(t)+1}], v[{pi}:{pi+1}], v[12:13], v[{gi(t)}:{gi(t)+1}]")
        a(f"v_cvt_pk_bf16_f32 v{32+j}, v{xr(t)}, v{xr(t)+1}")
        a(f"v_cvt_pk_bf16_f32 v{48+j}, v{gi(t)}, v{gi(t)+1}")
    PB = K1_PB
    a(f"""
    s_lshl_b32 s29, s27, 5
    v_add_u32 v9, s29, v7
    v_mul_u32_u24 v9, {PB}, v9
    s_lshl_b32 s29, s26, 7
    v_lshlrev_b32 v10, 6, v8
    v_add3_u32 v9, v9, v10, s29
    """)
    for i in range(4):
        a(f"ds_write_b128 v9, v[{32+4*i}:{35+4*i}] offset:{16*i}")
    for i in range(4):
        a(f"ds_write_b128 v9, v[{48+4*i}:{51+4*i}] offset:{64*PB + 16*i}")
    a(f"""
    v_lshrrev_b32 v10, 4, v0
    v_lshlrev_b32 v10, 3, v10
    v_lshrrev_b32 v11, 2, v0
    v_and_b32 v11, 3, v11
    v_add_u32 v10, v10, v11
    v_mul_u32_u24 v10, {PB}, v10
    v_and_b32 v11, 3, v0
    v_lshlrev_b32 v11, 3, v11
    s_lshl_b32 s29, s28, 6
    v_add3_u32 v10, v10, v11, s29
    v_and_b32 v11, 15, v0
    v_lshlrev_b32 v11, 12, v11
    v_lshrrev_b32 v12, 4, v0
    v_lshlrev_b32 v12, 4, v12
    v_add_u32 v11, v11, v12
    v_add_u32 v12, 0x10000, v11
    s_lshl_b32 s29, s30, 19
    s_lshl_b32 s35, s28, 17
    s_add_u32 s29, s29, s35
    s_lshl_b32 s35, s31, 7
    s_add_u32 s29, s29, s35
    s_mov_b32 s40, s16
    s_and_b32 s41, s17, 0xffff
    s_mov_b32 s42, {L*2048*2}
    s_mov_b32 s43, 0x00020000
    s_waitcnt lgkmcnt(0)
    s_barrier
    """)
    regs = []
    for j in range(2):
        for im in range(2):
            for q in range(2):
                r0 = 64 + 4 * len(regs)
                off = (64 * im + 32 * q) * PB + 32 * j
                a(f"ds_read_b64_tr_b16 v[{r0}:{r0+1}], v10 offset:{off}")
                a(f"ds_read_b64_tr_b16 v[{r0+2}:{r0+3}], v10 offset:{off + 4*PB}")
                regs.append((r0, j, im, q))
    for n_, (r0, j, im, q) in enumerate(regs):
        a(f"s_waitcnt lgkmcnt({2*(7-n_)})")
        va = 11 if j == 0 else 12
        a(f"buffer_store_dwordx4 v[{r0}:{r0+3}], v{va}, s[40:43], s29 offen offset:{im*2048 + q*64} {HSC}")
    if STAMP:
        a("s_waitcnt vmcnt(0)")
    stamp(a, 5, 16, 0)
    a.label("K1_END")
    a("s_endpgm")


K2_STAGE, K2_NB = 49152, 3
K2_LDS = K2_STAGE * K2_NB


def k2_dma_stage(a, b):
    if NODMA:
        return
    base = b * K2_STAGE
    for j in range(4):
        dma(a, 34, base + j * 1024, 1 + j, 4, 32)
    for j in range(2):
        dma(a, 38, base + 32768 + j * 1024, 5 + j, 8, 33)
    for j in range(4):
        dma(a, 34, base + 16384 + j * 1024, 1 + j, 4, 36)
    for j in range(2):
        dma(a, 38, base + 40960 + j * 1024, 5 + j, 12, 33)
    a("s_add_u32 s32, s32, 128")
    a("s_add_u32 s36, s36, 128")
    a("s_add_u32 s33, s33, 128")


def gen_k2(a):
    a.label("ssm_k2_kernel")
    a("""
    s_cmp_ge_u32 s2, 256
    s_cbranch_scc1 K2_END
    s_load_dwordx2 s[4:5], s[0:1], 88     ; ws (h')
    s_load_dwordx2 s[8:9], s[0:1], 40     ; C_re
    s_load_dwordx2 s[12:13], s[0:1], 48   ; C_im
    s_load_dwordx2 s[16:17], s[0:1], 0    ; x
    s_load_dwordx2 s[20:21], s[0:1], 72   ; out
    s_load_dwordx2 s[24:25], s[0:1], 64   ; Dskip
    """)
    a(WG_DECODE)
    a("""
    s_cmp_lt_u32 s28, 4
    s_cbranch_scc1 K2_MAIN
    s_sub_u32 s28, s28, 4
    v_lshrrev_b32 v7, 4, v0
    v_xor_b32 v7, v7, v0
    v_and_b32 v7, 7, v7
    v_lshlrev_b32 v7, 4, v7
    v_lshrrev_b32 v8, 3, v0
    v_lshl_add_u32 v1, v8, 12, v7
    v_xor_b32 v2, 64, v1
    v_add_u32 v2, 0x8000, v2
    v_add_u32 v3, 0x10000, v1
    v_add_u32 v4, 0x10000, v2
    v_lshl_add_u32 v5, v8, 11, v7
    v_xor_b32 v6, 64, v5
    v_add_u32 v6, 0x4000, v6
    s_lshl_b32 s32, s30, 19
    s_lshl_b32 s33, s28, 17
    s_add_u32 s32, s32, s33
    s_add_u32 s36, s32, 2048
    s_lshl_b32 s33, s31, 17
    s_lshl_b32 s34, s28, 15
    s_add_u32 s33, s33, s34
    s_lshl_b32 s34, s28, 12
    s_lshl_b32 s38, s28, 11
    s_waitcnt lgkmcnt(0)
    """)
    srd(a, 4, L * 2048 * 2)
    srd(a, 8, D * P * 2)
    srd(a, 12, D * P * 2)
    for b in range(2):
        k2_dma_stage(a, b)
    a("s_mov_b32 s35, 4")
    a.label("K2_PLOOP")
    for b in range(3):
        a("s_waitcnt vmcnt(12)")
        a("s_barrier")
        k2_dma_stage(a, (b + 2) % 3)
    a("""
    s_sub_u32 s35, s35, 1
    s_cmp_lg_u32 s35, 0
    s_cbranch_scc1 K2_PLOOP
    """)
    for b in range(2):
        a("s_waitcnt vmcnt(12)")
        a("s_barrier")
        k2_dma_stage(a, (b + 2) % 3)
    a("""
    s_waitcnt vmcnt(12)
    s_barrier
    s_waitcnt vmcnt(0)
    s_barrier
    s_endpgm
    """)
    a.label("K2_MAIN")
    a("""
    s_and_b32 s26, s28, 1              ; wm
    s_lshr_b32 s27, s28, 1             ; kh
    v_and_b32 v14, 31, v0
    v_lshrrev_b32 v15, 5, v0
    """)
    if K2M16:
        a("""
        v_and_b32 v14, 15, v0
        v_lshrrev_b32 v15, 4, v0
        """)
    a("""
    v_lshrrev_b32 v7, 1, v14
    v_and_b32 v7, 7, v7
    v_xor_b32 v7, v15, v7
    v_lshlrev_b32 v7, 4, v7
    s_lshl_b32 s29, s27, 14
    s_lshl_b32 s32, s26, 13
    s_add_u32 s29, s29, s32
    v_lshlrev_b32 v8, 7, v14
    v_add3_u32 v144, v8, v7, s29
    s_lshl_b32 s29, s27, 13
    s_add_u32 s29, s29, 32768
    v_add3_u32 v148, v8, v7, s29
    """)
    for ks in range(1, 4):
        kx = 64 * ks if K2M16 else 32 * ks
        a(f"v_xor_b32 v{144+ks}, {kx & 127}, v144")
        a(f"v_xor_b32 v{148+ks}, {kx & 127}, v148")
    for b in range(1, 3):
        for i in range(8):
            a(f"v_add_u32 v{144+8*b+i}, {b*K2_STAGE}, v{144+i}")
    a("s_waitcnt lgkmcnt(0)")
    srd(a, 16, L * D * 2)
    srd(a, 20, L * D * 4)
    stamp(a, 0, 4, 1)
    a("""
    v_lshrrev_b32 v16, 4, v0
    v_and_b32 v17, 15, v0
    v_lshlrev_b32 v18, 11, v16
    v_lshl_add_u32 v18, v17, 3, v18
    s_lshl_b32 s29, s30, 18
    s_lshl_b32 s37, s28, 16
    s_add_u32 s29, s29, s37
    s_lshl_b32 s37, s31, 7
    s_add_u32 s29, s29, s37
    v_lshlrev_b32 v19, 3, v17
    v_add_u32 v19, s37, v19
    global_load_dwordx2 v[20:21], v19, s[24:25]
    """)
    for i in range(8):
        a(f"buffer_load_dwordx2 v[{128+2*i}:{129+2*i}], v18, s[16:19], s29 offen")
        if i < 7:
            a("s_add_u32 s29, s29, 8192")
    for r in range(64, 128):
        a(f"v_mov_b32 v{r}, 0")

    sets = [(32, 36, 40, 44), (48, 52, 56, 60)]
    ACC = [[64, 80], [96, 112]]

    def stage16(b):
        a("s_barrier")
        FS = [32, 168]

        def rd(ks, f):
            va = 144 + 8 * b + ks
            vb = 148 + 8 * b + ks
            for i in range(4):
                a(f"ds_read_b128 v[{f+4*i}:{f+4*i+3}], v{va} offset:{2048*i}")
                a(f"ds_read_b128 v[{f+16+4*i}:{f+16+4*i+3}], v{vb} offset:{2048*i}")

        def mf(f):
            for i in range(4):
                for j in range(4):
                    acc = 64 + 16 * i + 4 * j
                    a(f"v_mfma_f32_16x16x32_bf16 v[{acc}:{acc+3}], v[{f+4*i}:{f+4*i+3}], v[{f+16+4*j}:{f+16+4*j+3}], v[{acc}:{acc+3}]")
        rd(0, FS[0])
        rd(1, FS[1])
        a("s_waitcnt lgkmcnt(8)")
        mf(FS[0])
        a("s_waitcnt lgkmcnt(0)")
        mf(FS[1])

    def stage(b):
        if K2M16:
            return stage16(b)
        a("s_barrier")

        def rd(ks, s):
            if NOCOMP > 1:
                return
            A0, A1, B0, B1 = s
            va = 144 + 8 * b + ks
            vb = 148 + 8 * b + ks
            a(f"ds_read_b128 v[{A0}:{A0+3}], v{va}")
            a(f"ds_read_b128 v[{B0}:{B0+3}], v{vb}")
            a(f"ds_read_b128 v[{B1}:{B1+3}], v{vb} offset:4096")
            a(f"ds_read_b128 v[{A1}:{A1+3}], v{va} offset:4096")

        def mf(s):
            A0, A1, B0, B1 = s
            mfma(a, ACC[0][0], A0, B0)
            mfma(a, ACC[0][1], A0, B1)
            mfma(a, ACC[1][0], A1, B0)
            mfma(a, ACC[1][1], A1, B1)
        compute_stage(a, rd, mf, sets)

    stamp(a, 1, 4, 1)
    a("s_mov_b32 s35, 5")
    a.label("K2_LOOP")
    for b in range(3):
        stage(b)
    a("""
    s_sub_u32 s35, s35, 1
    s_cmp_lg_u32 s35, 0
    s_cbranch_scc1 K2_LOOP
    """)
    stage(0)
    a("s_nop 15")
    a("s_nop 3")
    stamp(a, 2, 4, 1)
    a("""
    s_barrier
    s_lshl_b32 s29, s27, 15
    s_lshl_b32 s37, s26, 14
    s_add_u32 s29, s29, s37
    v_lshlrev_b32 v1, 10, v15
    v_lshl_add_u32 v1, v14, 2, v1
    v_add_u32 v1, s29, v1
    """)
    if K2M16:
        for i in range(4):
            for j in range(4):
                for r in range(4):
                    a(f"ds_write_b32 v1, v{64+16*i+4*j+r} offset:{(16*i + r)*256 + j*64}")
    else:
      for rb in range(2):
        for nb in range(2):
            for r in range(16):
                off = (32 * rb + (r & 3) + 8 * (r >> 2)) * 256 + nb * 128
                a(f"ds_write_b32 v1, v{ACC[rb][nb]+r} offset:{off}")
    a("""
    s_lshl_b32 s29, s28, 13
    v_lshlrev_b32 v2, 8, v16
    v_lshl_add_u32 v2, v17, 4, v2
    v_add_u32 v2, s29, v2
    v_lshlrev_b32 v3, 12, v16
    v_lshl_add_u32 v3, v17, 4, v3
    s_lshl_b32 s29, s30, 19
    s_lshl_b32 s37, s28, 17
    s_add_u32 s29, s29, s37
    s_lshl_b32 s37, s31, 8
    s_add_u32 s29, s29, s37
    s_waitcnt vmcnt(0)
    v_lshlrev_b32 v22, 16, v20
    v_and_b32 v23, 0xffff0000, v20
    v_lshlrev_b32 v24, 16, v21
    v_and_b32 v25, 0xffff0000, v21
    """)
    for i in range(8):
        xr = 128 + 2 * i
        S = 32 + 4 * i
        a(f"""
        v_lshlrev_b32 v{S}, 16, v{xr}
        v_and_b32 v{S+1}, 0xffff0000, v{xr}
        v_lshlrev_b32 v{S+2}, 16, v{xr+1}
        v_and_b32 v{S+3}, 0xffff0000, v{xr+1}
        v_mul_f32 v{S}, v{S}, v22
        v_mul_f32 v{S+1}, v{S+1}, v23
        v_mul_f32 v{S+2}, v{S+2}, v24
        v_mul_f32 v{S+3}, v{S+3}, v25
        v_cvt_pk_bf16_f32 v{S}, v{S}, v{S+1}
        v_cvt_pk_bf16_f32 v{S+2}, v{S+2}, v{S+3}
        v_and_b32 v{S+1}, 0xffff0000, v{S}
        v_lshlrev_b32 v{S}, 16, v{S}
        v_and_b32 v{S+3}, 0xffff0000, v{S+2}
        v_lshlrev_b32 v{S+2}, 16, v{S+2}
        """)
    a("""
    s_waitcnt lgkmcnt(0)
    s_barrier
    """)
    for i in range(8):
        a(f"ds_read_b128 v[{64+8*i}:{67+8*i}], v2 offset:{i*1024}")
        a(f"ds_read_b128 v[{68+8*i}:{71+8*i}], v2 offset:{32768 + i*1024}")
    for i in range(8):
        A = 64 + 8 * i
        S = 32 + 4 * i
        a(f"""
        s_waitcnt lgkmcnt({14-2*i})
        v_pk_add_f32 v[{A}:{A+1}], v[{A}:{A+1}], v[{A+4}:{A+5}]
        v_pk_add_f32 v[{A+2}:{A+3}], v[{A+2}:{A+3}], v[{A+6}:{A+7}]
        v_pk_add_f32 v[{A}:{A+1}], v[{A}:{A+1}], v[{S}:{S+1}]
        v_pk_add_f32 v[{A+2}:{A+3}], v[{A+2}:{A+3}], v[{S+2}:{S+3}]
        buffer_store_dwordx4 v[{A}:{A+3}], v3, s[20:23], s29 offen {OSC}
        s_add_u32 s29, s29, 16384
        """)
    if STAMP:
        a("s_waitcnt vmcnt(0)")
    stamp(a, 3, 4, 1)
    a.label("K2_END")
    a("s_endpgm")


HEADER = """; S5 SSM (GEMM -> diagonal complex scan -> GEMM), generated by work/gen4.py (hand-designed schedule)
; @launch kernel=ssm_k1_kernel grid=(256,1,1) block=(512,1,1) lds={k1lds}
; @launch kernel=ssm_k2_kernel grid=(256,1,1) block=(512,1,1) lds={k2lds}
.amdgcn_target "amdgcn-amd-amdhsa--gfx950"
.text
"""

KD = """
.amdhsa_kernel {name}
  .amdhsa_next_free_vgpr {vgpr}
  .amdhsa_next_free_sgpr 64
  .amdhsa_accum_offset {vgpr}
  .amdhsa_group_segment_fixed_size 0
  .amdhsa_kernarg_size 96
  .amdhsa_user_sgpr_count 2
  .amdhsa_user_sgpr_kernarg_segment_ptr 1
  .amdhsa_system_sgpr_workgroup_id_x 1
  .amdhsa_float_denorm_mode_32 3
  .amdhsa_float_denorm_mode_16_64 3
.end_amdhsa_kernel
"""


def main():
    out = HEADER.format(k1lds=K1_LDS, k2lds=K2_LDS)
    a = Asm()
    a.lines.append(".globl ssm_k1_kernel\n.p2align 8\n.type ssm_k1_kernel,@function")
    gen_k1(a)
    a.lines.append(".globl ssm_k2_kernel\n.p2align 8\n.type ssm_k2_kernel,@function")
    gen_k2(a)
    out += a.text()
    out += '.section .rodata,"a"\n.p2align 6\n'
    out += KD.format(name="ssm_k1_kernel", vgpr=256)
    out += ".p2align 6\n"
    out += KD.format(name="ssm_k2_kernel", vgpr=256 if STAMP else (200 if K2M16 else 168))
    path = sys.argv[1] if len(sys.argv) > 1 else "standalone__ssm_conv_s5__prompt.s"
    open(path, "w").write(out)
    print("wrote", path, len(out))


if __name__ == "__main__":
    main()
```

```python
import sys, os


def env(name, default=0):
    return int(os.environ.get(name, str(default)))


NOCOMP, NODMA, STAMP = env("NOCOMP"), env("NODMA"), env("STAMP")
PF1, PFC = env("PF1", 3), env("PFC", 1)
HSC, OSC = os.environ.get("HSC", "sc1"), os.environ.get("OSC", "sc1")
K2M16 = env("K2M16", 1)

L, D, P = 2048, 1024, 1024
WS_AGG = 8 << 20
WS_STAMP = 16 << 20


class Asm:
    def __init__(self):
        self.lines = []

    def __call__(self, s=""):
        for ln in s.strip("\n").split("\n"):
            t = ln.strip()
            self.lines.append(("    " + t) if t else "")

    def label(self, s):
        self.lines.append(s + ":")

    def text(self):
        return "\n".join(self.lines) + "\n"


def stamp(a, idx, wsreg, kern):
    if not STAMP:
        return
    for nm, off, ins in (("ST", idx, "s_memrealtime"), ("SU", 8 + idx, "s_memtime")):
        a(f"""
        {ins} s[44:45]
        s_lshl_b32 s46, s2, 7
        s_add_u32 s46, s46, {WS_STAMP + off*8 + kern*65536}
        s_waitcnt lgkmcnt(0)
        v_mov_b32 v254, s44
        v_mov_b32 v255, s45
        v_mov_b32 v253, s46
        s_cmp_lg_u32 s28, 0
        s_cbranch_scc1 {nm}_{kern}_{idx}
        v_cmp_eq_u32 vcc, 0, v0
        s_and_saveexec_b64 s[46:47], vcc
        global_store_dwordx2 v253, v[254:255], s[{wsreg}:{wsreg+1}]
        s_mov_b64 exec, s[46:47]
        """)
        a.label(f"{nm}_{kern}_{idx}")


def srd(a, d, nbytes):
    a(f"s_and_b32 s{d+1}, s{d+1}, 0xffff")
    a(f"s_mov_b32 s{d+2}, {nbytes}")
    a(f"s_mov_b32 s{d+3}, 0x00020000")


def mfma(a, acc, A, B):
    if NOCOMP:
        return
    a(f"v_mfma_f32_32x32x16_bf16 v[{acc}:{acc+15}], v[{A}:{A+3}], v[{B}:{B+3}], v[{acc}:{acc+15}]")


LOG2E_HI, LOG2E_LO, LN2 = 0x3fb8aa3b, 0x32a57060, 0x3f317218


def exp_f32(a, dst, src, t0, t1, sA, sB):
    a(f"""
    s_mov_b32 s{sA}, {LOG2E_HI:#x}
    s_mov_b32 s{sB}, {LOG2E_LO:#x}
    v_mul_f32 v{t0}, s{sA}, v{src}
    v_fma_f32 v{t1}, v{src}, s{sA}, -v{t0}
    v_fma_f32 v{t1}, v{src}, s{sB}, v{t1}
    v_exp_f32 v{t0}, v{t0}
    s_mov_b32 s{sA}, {LN2:#x}
    v_mul_f32 v{t1}, s{sA}, v{t1}
    s_nop 0
    v_fma_f32 v{dst}, v{t0}, v{t1}, v{t0}
    """)


def csq(a, dr, di, sr, si, t):
    a(f"""
    v_mul_f32 v{t}, v{si}, v{si}
    v_fma_f32 v{dr}, v{sr}, v{sr}, -v{t}
    v_add_f32 v{t}, v{sr}, v{sr}
    v_mul_f32 v{di}, v{t}, v{si}
    """)


def cfma(a, dr, di, ar, ai, br, bi, cr, ci):
    a(f"""
    v_fma_f32 v{dr}, v{ar}, v{br}, v{cr}
    v_fma_f32 v{di}, v{ar}, v{bi}, v{ci}
    v_fma_f32 v{dr}, -v{ai}, v{bi}, v{dr}
    v_fma_f32 v{di}, v{ai}, v{br}, v{di}
    """)


WG_DECODE = """
    s_and_b32 s26, s2, 7
    s_lshr_b32 s27, s2, 3
    s_and_b32 s30, s26, 3
    s_lshl_b32 s30, s30, 2
    s_and_b32 s31, s27, 3
    s_add_u32 s30, s30, s31            ; s30 = chunk
    s_lshr_b32 s31, s26, 2
    s_lshl_b32 s31, s31, 3
    s_lshr_b32 s27, s27, 2
    s_add_u32 s31, s31, s27
    v_lshrrev_b32 v1, 6, v0
    v_and_b32 v0, 63, v0               ; v0 = lane
    v_readfirstlane_b32 s28, v1        ; s28 = wave
    s_nop 3
"""


def compute_stage(a, rd, mf, sets):
    rd(0, sets[0])
    for ks in range(4):
        if ks < 3:
            rd(ks + 1, sets[(ks + 1) & 1])
            a("s_waitcnt lgkmcnt(4)")
        else:
            a("s_waitcnt lgkmcnt(0)")
        mf(sets[ks & 1])


def dma(a, m0base, m0off, voff, srdr, soff):
    a(f"s_add_u32 m0, s{m0base}, {m0off}")
    a("s_nop 0")
    a(f"buffer_load_dwordx4 v{voff}, s[{srdr}:{srdr+3}], s{soff} offen lds")


K1_STAGE, K1_NB = 32768, 4
K1_AGG = K1_STAGE * K1_NB
K1_LDS = K1_AGG + 2048
K1_PB = 272


def k1_dma_stage(a, b):
    if NODMA:
        return
    base = b * K1_STAGE
    for j in range(4):
        dma(a, 34, base + j * 1024, 1 + j, 4, 32)
    for j in range(2):
        dma(a, 38, base + 16384 + j * 1024, 1 + j, 8, 33)
    for j in range(2):
        dma(a, 38, base + 24576 + j * 1024, 1 + j, 12, 33)
    a("s_add_u32 s32, s32, 128")
    a("s_add_u32 s33, s33, 128")


def gen_k1(a):
    a.label("ssm_k1_kernel")
    a("""
    s_cmp_ge_u32 s2, 256
    s_cbranch_scc1 K1_END
    s_load_dwordx2 s[4:5], s[0:1], 0
    s_load_dwordx2 s[8:9], s[0:1], 24
    s_load_dwordx2 s[12:13], s[0:1], 32
    s_load_dwordx2 s[16:17], s[0:1], 88
    s_load_dwordx2 s[18:19], s[0:1], 80
    s_load_dwordx2 s[20:21], s[0:1], 8
    s_load_dwordx2 s[22:23], s[0:1], 16
    s_load_dwordx2 s[24:25], s[0:1], 56
    s_load_dwordx2 s[40:41], s[0:1], 40
    s_load_dwordx2 s[42:43], s[0:1], 48
    """)
    a(WG_DECODE)
    a("""
    s_cmp_lt_u32 s28, 4
    s_cbranch_scc1 K1_MAIN
    s_sub_u32 s28, s28, 4
    v_lshrrev_b32 v1, 3, v0
    v_lshlrev_b32 v1, 11, v1
    v_lshrrev_b32 v2, 4, v0
    v_xor_b32 v2, v2, v0
    v_and_b32 v2, 7, v2
    v_lshlrev_b32 v2, 4, v2
    v_add_u32 v1, v1, v2
    v_xor_b32 v2, 64, v1
    v_add_u32 v2, 0x4000, v2
    v_add_u32 v3, 0x8000, v1
    v_add_u32 v4, 0x8000, v2
    s_lshl_b32 s32, s30, 18
    s_lshl_b32 s33, s28, 16
    s_add_u32 s32, s32, s33
    s_lshl_b32 s33, s31, 17
    s_lshl_b32 s34, s28, 15
    s_add_u32 s33, s33, s34
    s_lshl_b32 s34, s28, 12
    s_lshl_b32 s38, s28, 11
    s_waitcnt lgkmcnt(0)
    """)
    srd(a, 4, L * D * 2)
    srd(a, 8, P * D * 2)
    srd(a, 12, P * D * 2)
    for b in range(3):
        k1_dma_stage(a, b)
    a("s_mov_b32 s35, 3")
    a.label("K1_PLOOP")
    for b in range(4):
        a("s_waitcnt vmcnt(16)")
        a("s_barrier")
        k1_dma_stage(a, (b + 3) % 4)
    a("""
    s_sub_u32 s35, s35, 1
    s_cmp_lg_u32 s35, 0
    s_cbranch_scc1 K1_PLOOP
    s_waitcnt vmcnt(16)
    s_barrier
    """)
    k1_dma_stage(a, 3)
    a("""
    s_waitcnt vmcnt(16)
    s_barrier
    s_waitcnt vmcnt(8)
    s_barrier
    s_waitcnt vmcnt(0)
    s_barrier
    s_endpgm
    """)

    a.label("K1_MAIN")
    a("""
    s_lshr_b32 s26, s28, 1             ; wr
    s_and_b32 s27, s28, 1              ; wc
    v_and_b32 v7, 31, v0               ; n / m
    v_lshrrev_b32 v8, 5, v0            ; hb
    s_lshl_b32 s29, s31, 6
    s_lshl_b32 s32, s27, 5
    s_add_u32 s29, s29, s32
    v_add_u32 v9, s29, v7
    v_lshlrev_b32 v9, 1, v9
    v_mov_b32 v244, 0
    s_waitcnt lgkmcnt(0)
    s_mov_b32 s48, s4
    s_mov_b32 s49, s5
    """)
    stamp(a, 0, 16, 0)
    a(f"""
    global_load_ushort v10, v9, s[20:21]
    global_load_ushort v11, v9, s[22:23]
    global_load_ushort v12, v9, s[24:25]
    s_cmp_lg_u32 s28, 0
    s_cbranch_scc1 K1_NOCLR
    s_lshl_b32 s29, s31, 14
    s_lshl_b32 s32, s30, 10
    s_add_u32 s29, s29, s32
    s_add_u32 s29, s29, {WS_AGG}
    v_lshlrev_b32 v1, 4, v0
    v_add_u32 v1, s29, v1
    v_mov_b32 v32, 0
    v_mov_b32 v33, 0
    v_mov_b32 v34, 0
    v_mov_b32 v35, 0
    s_lshl_b32 s29, s31, 2
    v_mov_b32 v2, s29
    v_mov_b32 v3, 1
    global_store_dwordx4 v1, v[32:35], s[16:17] sc1
    v_mov_b32 v247, v2
    v_mov_b32 v248, v3
    s_waitcnt vmcnt(1)
    """)
    a("s_branch K1_CLRD")
    a.label("K1_NOCLR")
    if PF1 == 3:
        a("""
        v_lshlrev_b32 v1, 7, v0
        s_cmp_eq_u32 s28, 1
        s_cbranch_scc0 K1_PF3B
        s_lshl_b32 s29, s2, 14
        v_add_u32 v1, s29, v1
        v_add_u32 v2, 0x2000, v1
        global_load_dword v240, v1, s[4:5]
        global_load_dword v241, v2, s[4:5]
        s_waitcnt vmcnt(2)
        s_branch K1_CLRD
        """)
        a.label("K1_PF3B")
        a("""
        s_lshl_b32 s29, s2, 13
        v_add_u32 v1, s29, v1
        s_cmp_eq_u32 s28, 2
        s_cbranch_scc0 K1_PF3C
        global_load_dword v240, v1, s[8:9]
        s_waitcnt vmcnt(1)
        s_branch K1_CLRD
        """)
        a.label("K1_PF3C")
        a("""
        global_load_dword v240, v1, s[12:13]
        s_waitcnt vmcnt(1)
        """)
    elif PF1:
        a("""
        s_lshr_b32 s29, s2, 3
        s_lshl_b32 s29, s29, 4             ; 16*j
        s_and_b32 s32, s2, 3
        s_bfe_u32 s33, s2, 0x10002
        s_cmp_eq_u32 s28, 1
        s_cselect_b32 s32, s32, s33
        s_lshl_b32 s32, s32, 9
        s_add_u32 s29, s29, s32
        v_and_b32 v1, 15, v0
        v_add_u32 v1, s29, v1
        v_lshlrev_b32 v1, 11, v1
        v_lshrrev_b32 v2, 4, v0
        v_lshl_add_u32 v1, v2, 7, v1
        s_cmp_eq_u32 s28, 2
        s_cbranch_scc1 K1_PFB
        s_cmp_eq_u32 s28, 3
        s_cbranch_scc1 K1_PFBI
        """)
        blocks = range(4) if PF1 == 1 else [1]
        a("s_mov_b32 s48, s4")
        a("s_mov_b32 s49, s5")
        a("s_branch K1_PFD")
        a.label("K1_PFB")
        a("s_mov_b32 s48, s8")
        a("s_mov_b32 s49, s9")
        a("s_branch K1_PFD")
        a.label("K1_PFBI")
        a("s_mov_b32 s48, s12")
        a("s_mov_b32 s49, s13")
        a.label("K1_PFD")
        for i in blocks:
            a(f"global_load_dword v{240+i}, v1, s[48:49] offset:{i*512}")
        a("v_add_u32 v244, 1024, v1")
        a(f"s_waitcnt vmcnt({len(blocks)})")
    else:
        a("s_waitcnt vmcnt(0)")
    a.label("K1_CLRD")
    a("""
    v_lshrrev_b32 v1, 2, v7
    v_and_b32 v1, 1, v1
    v_lshlrev_b32 v1, 5, v1
    v_and_b32 v2, 3, v7
    v_add_u32 v1, v1, v2
    v_lshrrev_b32 v2, 3, v7
    v_lshlrev_b32 v2, 2, v2
    v_add_u32 v1, v1, v2
    s_lshl_b32 s29, s26, 6
    v_add_u32 v1, s29, v1
    v_lshrrev_b32 v2, 1, v1
    v_and_b32 v2, 7, v2
    v_xor_b32 v2, v8, v2
    v_lshlrev_b32 v2, 4, v2
    v_lshl_add_u32 v192, v1, 7, v2
    s_lshl_b32 s29, s27, 5
    v_add_u32 v1, s29, v7
    v_lshrrev_b32 v2, 1, v1
    v_and_b32 v2, 7, v2
    v_xor_b32 v2, v8, v2
    v_lshlrev_b32 v2, 4, v2
    v_lshl_add_u32 v196, v1, 7, v2
    v_add_u32 v196, 0x4000, v196
    """)
    for ks in range(1, 4):
        a(f"v_xor_b32 v{192+ks}, {32*ks}, v192")
        a(f"v_xor_b32 v{196+ks}, {32*ks}, v196")
    for i in range(8):
        a(f"v_add_u32 v{200+i}, 0x10000, v{192+i}")
    for r in range(64, 128):
        a(f"v_mov_b32 v{r}, 0")
    a("""
    v_lshlrev_b32 v10, 16, v10
    v_lshlrev_b32 v11, 16, v11
    v_lshlrev_b32 v12, 16, v12
    """)
    exp_f32(a, 13, 12, 14, 15, 36, 37)
    a("""
    v_cvt_pk_bf16_f32 v13, v13, v13
    v_lshlrev_b32 v13, 16, v13
    v_mul_f32 v14, v13, v10
    v_mul_f32 v15, v13, v11
    """)
    exp_f32(a, 16, 14, 17, 18, 36, 37)
    a("""
    v_mul_f32 v17, 0.15915494, v15
    v_fract_f32 v17, v17
    v_sin_f32 v18, v17
    v_cos_f32 v19, v17
    s_nop 0
    v_mul_f32 v20, v16, v19            ; Lr
    v_mul_f32 v21, v16, v18            ; Li
    v_sub_f32 v22, 0, v21              ; -Li
    v_add_f32 v13, -1.0, v20
    v_mul_f32 v14, v13, v10
    v_fma_f32 v14, v21, v11, v14
    v_mul_f32 v15, v21, v10
    v_fma_f32 v15, -v13, v11, v15
    v_mul_f32 v16, v10, v10
    v_fma_f32 v16, v11, v11, v16
    v_rcp_f32 v17, v16
    s_nop 0
    v_fma_f32 v18, -v16, v17, 1.0
    v_fma_f32 v17, v17, v18, v17
    v_mul_f32 v23, v14, v17            ; cr
    v_mul_f32 v24, v15, v17            ; ci
    v_mul_f32 v25, v23, v20
    v_fma_f32 v25, -v24, v21, v25
    v_mul_f32 v26, v23, v21
    v_fma_f32 v26, v24, v20, v26       ; q (im)
    v_add_f32 v208, v23, v23           ; (2cr,2cr)
    v_add_f32 v209, v23, v23
    v_mul_f32 v210, -2.0, v24          ; (-2ci,-2ci)
    v_mul_f32 v211, -2.0, v24
    v_mul_f32 v212, -2.0, v23          ; (-2cr,-2cr)
    v_mul_f32 v213, -2.0, v23
    """)
    csq(a, 13, 14, 20, 21, 17)
    a("""
    v_mov_b32 v214, v13                ; (L2r,L2r)
    v_mov_b32 v215, v13
    v_mov_b32 v216, v14                ; (L2i,L2i)
    v_mov_b32 v217, v14
    v_sub_f32 v218, 0, v14             ; (-L2i,-L2i)
    v_sub_f32 v219, 0, v14
    """)
    csq(a, 15, 16, 13, 14, 17)
    csq(a, 13, 14, 15, 16, 17)
    csq(a, 15, 16, 13, 14, 17)
    csq(a, 27, 28, 15, 16, 17)
    csq(a, 13, 14, 27, 28, 17)
    csq(a, 29, 30, 13, 14, 17)

    ACC = [[64, 80], [96, 112]]
    sets = [(32, 36, 40, 44), (48, 52, 56, 60)]

    def stage(b):
        a("s_barrier")

        def rd(ks, s):
            if NOCOMP > 1:
                return
            A0, A1, B0, B1 = s
            va = (192 if b < 2 else 200) + ks
            vb = (196 if b < 2 else 204) + ks
            base = (b & 1) * K1_STAGE
            a(f"ds_read_b128 v[{A0}:{A0+3}], v{va} offset:{base}")
            a(f"ds_read_b128 v[{B0}:{B0+3}], v{vb} offset:{base}")
            a(f"ds_read_b128 v[{B1}:{B1+3}], v{vb} offset:{base + 8192}")
            a(f"ds_read_b128 v[{A1}:{A1+3}], v{va} offset:{base + 2048}")

        def mf(s):
            A0, A1, B0, B1 = s
            mfma(a, ACC[0][0], A0, B0)
            mfma(a, ACC[0][1], A0, B1)
            mfma(a, ACC[1][0], A1, B0)
            mfma(a, ACC[1][1], A1, B1)
        compute_stage(a, rd, mf, sets)

    stamp(a, 1, 16, 0)
    a("s_mov_b32 s35, 4")
    a.label("K1_LOOP")
    a("""
    s_cmp_lg_u32 s28, 0
    s_cbranch_scc1 K1_NOSIG
    s_cmp_lg_u32 s35, 3
    s_cbranch_scc1 K1_NOSIG
    s_waitcnt vmcnt(0)
    v_cmp_eq_u32 vcc, 0, v0
    s_and_saveexec_b64 s[36:37], vcc
    global_atomic_add v247, v248, s[18:19]
    s_mov_b64 exec, s[36:37]
    """)
    if PFC:
        a("""
        s_lshl_b32 s29, s2, 13
        v_lshlrev_b32 v1, 7, v0
        v_add_u32 v1, s29, v1
        global_load_dword v245, v1, s[40:41]
        global_load_dword v246, v1, s[42:43]
        """)
    a.label("K1_NOSIG")
    if PF1 == 2:
        a("""
        s_cmp_eq_u32 s28, 0
        s_cbranch_scc1 K1_LPF
        s_cmp_lt_u32 s35, 3
        s_cbranch_scc1 K1_LPF
        global_load_dword v240, v244, s[48:49]
        v_add_u32 v244, 512, v244
        """)
        a.label("K1_LPF")
    for b in range(4):
        stage(b)
    a("""
    s_sub_u32 s35, s35, 1
    s_cmp_lg_u32 s35, 0
    s_cbranch_scc1 K1_LOOP
    s_nop 15
    s_nop 3
    """)
    stamp(a, 2, 16, 0)

    def gr(t):
        return ACC[t // 16][0] + (t % 16)

    def gi(t):
        return ACC[t // 16][1] + (t % 16)

    a("""
    s_lshl_b32 s29, s31, 2
    v_mov_b32 v34, s29
    global_load_dword v35, v34, s[18:19] sc1
    """)
    for t in range(1, 32):
        a(f"v_fmac_f32 v{gr(t)}, v20, v{gr(t-1)}")
        a(f"v_fmac_f32 v{gi(t)}, v20, v{gi(t-1)}")
        a(f"v_fmac_f32 v{gr(t)}, v22, v{gi(t-1)}")
        a(f"v_fmac_f32 v{gi(t)}, v21, v{gr(t-1)}")
    a(f"""
    s_lshl_b32 s29, s27, 5
    v_add_u32 v9, s29, v7
    v_lshlrev_b32 v10, 3, v9
    v_add_u32 v10, {K1_AGG}, v10
    s_lshl_b32 s29, s26, 1
    v_add_u32 v11, s29, v8
    v_lshlrev_b32 v11, 9, v11
    v_add_u32 v11, v11, v10
    ds_write2_b32 v11, v{gr(31)}, v{gi(31)} offset0:0 offset1:1
    s_mov_b32 s35, 0x40000
    """)
    a.label("K1_POLL")
    a("""
    s_waitcnt vmcnt(0)
    v_readfirstlane_b32 s29, v35
    s_nop 3
    s_cmp_ge_u32 s29, 16
    s_cbranch_scc1 K1_POLL_DONE
    s_sub_u32 s35, s35, 1
    s_cmp_eq_u32 s35, 0
    s_cbranch_scc1 K1_POLL_DONE
    s_sleep 2
    global_load_dword v35, v34, s[18:19] sc1
    s_branch K1_POLL
    """)
    a.label("K1_POLL_DONE")
    stamp(a, 3, 16, 0)
    a(f"""
    s_waitcnt lgkmcnt(0)
    s_barrier
    ds_read_b64 v[12:13], v10
    ds_read_b64 v[14:15], v10 offset:512
    ds_read_b64 v[16:17], v10 offset:1024
    ds_read_b64 v[18:19], v10 offset:1536
    s_lshl_b32 s29, s31, 14
    s_add_u32 s29, s29, {WS_AGG}
    v_lshlrev_b32 v9, 4, v9
    v_add_u32 v9, s29, v9
    s_lshl_b32 s29, s30, 10
    v_add_u32 v11, s29, v9
    s_waitcnt lgkmcnt(0)
    """)
    cfma(a, 36, 37, 12, 13, 27, 28, 14, 15)
    cfma(a, 38, 39, 36, 37, 27, 28, 16, 17)
    cfma(a, 32, 34, 38, 39, 27, 28, 18, 19)
    a("""
    v_mov_b32 v33, -1
    v_mov_b32 v35, -1
    s_cmp_lg_u32 s26, 0
    s_cbranch_scc1 K1_NOPUB
    v_cmp_gt_u32 vcc, 32, v0
    s_and_saveexec_b64 s[36:37], vcc
    global_store_dwordx4 v11, v[32:35], s[16:17] sc1
    s_mov_b64 exec, s[36:37]
    """)
    a.label("K1_NOPUB")
    X, PI = 128, 160

    def xr(t):
        return X + t

    def pi_(t):
        return PI + t
    for t in range(0, 32, 2):
        a(f"v_pk_mul_f32 v[{xr(t)}:{xr(t)+1}], v[{gr(t)}:{gr(t)+1}], v[208:209]")
        a(f"v_pk_fma_f32 v[{xr(t)}:{xr(t)+1}], v[{gi(t)}:{gi(t)+1}], v[210:211], v[{xr(t)}:{xr(t)+1}]")
        a(f"v_pk_mul_f32 v[{gi(t)}:{gi(t)+1}], v[{gi(t)}:{gi(t)+1}], v[212:213]")
        a(f"v_pk_fma_f32 v[{gi(t)}:{gi(t)+1}], v[{gr(t)}:{gr(t)+1}], v[210:211], v[{gi(t)}:{gi(t)+1}]")
    a(f"""
    v_mov_b32 v{gr(0)}, 1.0
    v_mov_b32 v{gr(1)}, v20
    v_mov_b32 v{pi_(0)}, 0
    v_mov_b32 v{pi_(1)}, v22
    """)
    for t in range(2, 32, 2):
        pr0, pi0, pr1, pi1 = gr(t - 2), pi_(t - 2), gr(t), pi_(t)
        a(f"v_pk_mul_f32 v[{pr1}:{pr1+1}], v[{pr0}:{pr0+1}], v[214:215]")
        a(f"v_pk_mul_f32 v[{pi1}:{pi1+1}], v[{pi0}:{pi0+1}], v[214:215]")
        a(f"v_pk_fma_f32 v[{pr1}:{pr1+1}], v[{pi0}:{pi0+1}], v[216:217], v[{pr1}:{pr1+1}]")
        a(f"v_pk_fma_f32 v[{pi1}:{pi1+1}], v[{pr0}:{pr0+1}], v[218:219], v[{pi1}:{pi1+1}]")
    a("""
    v_mov_b32 v36, 0
    v_mov_b32 v37, 0
    s_cmp_eq_u32 s30, 0
    s_cbranch_scc1 K1_CARRY_DONE
    v_add_u32 v40, 0x1000, v9
    v_add_u32 v41, 0x2000, v9
    v_add_u32 v42, 0x3000, v9
    s_mov_b32 s35, 0x40000
    """)
    EB = 192
    a.label("K1_GPOLL")
    for cc in range(15):
        if cc > 0:
            a(f"s_cmp_le_u32 s30, {cc}")
            a("s_cbranch_scc1 K1_GP_ISSUED")
        vb = [9, 40, 41, 42][cc // 4]
        a(f"global_load_dwordx4 v[{EB+4*cc}:{EB+4*cc+3}], v{vb}, s[16:17] offset:{(cc%4)*1024} sc1")
    a.label("K1_GP_ISSUED")
    a("s_waitcnt vmcnt(0)")
    a("v_mov_b32 v38, -1")
    for cc in range(15):
        if cc > 0:
            a(f"s_cmp_le_u32 s30, {cc}")
            a("s_cbranch_scc1 K1_GP_CHECKED")
        a(f"v_and_b32 v38, v38, v{EB+4*cc+1}")
        a(f"v_and_b32 v38, v38, v{EB+4*cc+3}")
    a.label("K1_GP_CHECKED")
    a("""
    v_cmp_ne_u32 vcc, -1, v38
    s_cbranch_vccz K1_GP_DONE
    s_sub_u32 s35, s35, 1
    s_cmp_eq_u32 s35, 0
    s_cbranch_scc1 K1_GP_DONE
    s_sleep 1
    s_branch K1_GPOLL
    """)
    a.label("K1_GP_DONE")
    a(f"v_mov_b32 v36, v{EB}")
    a(f"v_mov_b32 v37, v{EB+2}")
    for cc in range(1, 15):
        a(f"s_cmp_le_u32 s30, {cc}")
        a("s_cbranch_scc1 K1_CARRY_DONE")
        cfma(a, 38, 39, 36, 37, 29, 30, EB + 4 * cc, EB + 4 * cc + 2)
        a("v_mov_b32 v36, v38")
        a("v_mov_b32 v37, v39")
    a.label("K1_CARRY_DONE")
    stamp(a, 4, 16, 0)
    cfma(a, 38, 39, 36, 37, 27, 28, 12, 13)
    cfma(a, 40, 41, 38, 39, 27, 28, 14, 15)
    cfma(a, 42, 43, 40, 41, 27, 28, 16, 17)
    a("""
    v_cmp_lt_u32 vcc, 31, v0
    s_cmp_lg_u32 s26, 0
    s_cbranch_scc1 K1_SEL_HI
    v_cndmask_b32 v44, v36, v38, vcc
    v_cndmask_b32 v45, v37, v39, vcc
    s_branch K1_SEL_DONE
    """)
    a.label("K1_SEL_HI")
    a("""
    s_nop 0
    v_cndmask_b32 v44, v40, v42, vcc
    v_cndmask_b32 v45, v41, v43, vcc
    """)
    a.label("K1_SEL_DONE")
    a("""
    v_mul_f32 v46, v25, v44
    v_fma_f32 v46, -v26, v45, v46
    v_mul_f32 v47, v25, v45
    v_fma_f32 v47, v26, v44, v47
    v_add_f32 v12, v46, v46
    v_add_f32 v13, v46, v46
    v_mul_f32 v14, -2.0, v47
    v_mul_f32 v15, -2.0, v47
    v_add_f32 v16, v47, v47
    v_add_f32 v17, v47, v47
    """)
    for j in range(16):
        t = 2 * j
        pr, pi = gr(t), pi_(t)
        a(f"v_pk_fma_f32 v[{xr(t)}:{xr(t)+1}], v[{pr}:{pr+1}], v[12:13], v[{xr(t)}:{xr(t)+1}]")
        a(f"v_pk_fma_f32 v[{gi(t)}:{gi(t)+1}], v[{pr}:{pr+1}], v[14:15], v[{gi(t)}:{gi(t)+1}]")
        a(f"v_pk_fma_f32 v[{xr(t)}:{xr(t)+1}], v[{pi}:{pi+1}], v[16:17], v[{xr(t)}:{xr(t)+1}]")
        a(f"v_pk_fma_f32 v[{gi(t)}:{gi(t)+1}], v[{pi}:{pi+1}], v[12:13], v[{gi(t)}:{gi(t)+1}]")
        a(f"v_cvt_pk_bf16_f32 v{32+j}, v{xr(t)}, v{xr(t)+1}")
        a(f"v_cvt_pk_bf16_f32 v{48+j}, v{gi(t)}, v{gi(t)+1}")
    PB = K1_PB
    a(f"""
    s_lshl_b32 s29, s27, 5
    v_add_u32 v9, s29, v7
    v_mul_u32_u24 v9, {PB}, v9
    s_lshl_b32 s29, s26, 7
    v_lshlrev_b32 v10, 6, v8
    v_add3_u32 v9, v9, v10, s29
    """)
    for i in range(4):
        a(f"ds_write_b128 v9, v[{32+4*i}:{35+4*i}] offset:{16*i}")
    for i in range(4):
        a(f"ds_write_b128 v9, v[{48+4*i}:{51+4*i}] offset:{64*PB + 16*i}")
    a(f"""
    v_lshrrev_b32 v10, 4, v0
    v_lshlrev_b32 v10, 3, v10
    v_lshrrev_b32 v11, 2, v0
    v_and_b32 v11, 3, v11
    v_add_u32 v10, v10, v11
    v_mul_u32_u24 v10, {PB}, v10
    v_and_b32 v11, 3, v0
    v_lshlrev_b32 v11, 3, v11
    s_lshl_b32 s29, s28, 6
    v_add3_u32 v10, v10, v11, s29
    v_and_b32 v11, 15, v0
    v_lshlrev_b32 v11, 12, v11
    v_lshrrev_b32 v12, 4, v0
    v_lshlrev_b32 v12, 4, v12
    v_add_u32 v11, v11, v12
    v_add_u32 v12, 0x10000, v11
    s_lshl_b32 s29, s30, 19
    s_lshl_b32 s35, s28, 17
    s_add_u32 s29, s29, s35
    s_lshl_b32 s35, s31, 7
    s_add_u32 s29, s29, s35
    s_mov_b32 s40, s16
    s_and_b32 s41, s17, 0xffff
    s_mov_b32 s42, {L*2048*2}
    s_mov_b32 s43, 0x00020000
    s_waitcnt lgkmcnt(0)
    s_barrier
    """)
    regs = []
    for j in range(2):
        for im in range(2):
            for q in range(2):
                r0 = 64 + 4 * len(regs)
                off = (64 * im + 32 * q) * PB + 32 * j
                a(f"ds_read_b64_tr_b16 v[{r0}:{r0+1}], v10 offset:{off}")
                a(f"ds_read_b64_tr_b16 v[{r0+2}:{r0+3}], v10 offset:{off + 4*PB}")
                regs.append((r0, j, im, q))
    for n_, (r0, j, im, q) in enumerate(regs):
        a(f"s_waitcnt lgkmcnt({2*(7-n_)})")
        va = 11 if j == 0 else 12
        a(f"buffer_store_dwordx4 v[{r0}:{r0+3}], v{va}, s[40:43], s29 offen offset:{im*2048 + q*64} {HSC}")
    if STAMP:
        a("s_waitcnt vmcnt(0)")
    stamp(a, 5, 16, 0)
    a.label("K1_END")
    a("s_endpgm")


K2_STAGE, K2_NB = 49152, 3
K2_LDS = K2_STAGE * K2_NB


def k2_dma_stage(a, b):
    if NODMA:
        return
    base = b * K2_STAGE
    for j in range(4):
        dma(a, 34, base + j * 1024, 1 + j, 4, 32)
    for j in range(2):
        dma(a, 38, base + 32768 + j * 1024, 5 + j, 8, 33)
    for j in range(4):
        dma(a, 34, base + 16384 + j * 1024, 1 + j, 4, 36)
    for j in range(2):
        dma(a, 38, base + 40960 + j * 1024, 5 + j, 12, 33)
    a("s_add_u32 s32, s32, 128")
    a("s_add_u32 s36, s36, 128")
    a("s_add_u32 s33, s33, 128")


def gen_k2(a):
    a.label("ssm_k2_kernel")
    a("""
    s_cmp_ge_u32 s2, 256
    s_cbranch_scc1 K2_END
    s_load_dwordx2 s[4:5], s[0:1], 88     ; ws (h')
    s_load_dwordx2 s[8:9], s[0:1], 40     ; C_re
    s_load_dwordx2 s[12:13], s[0:1], 48   ; C_im
    s_load_dwordx2 s[16:17], s[0:1], 0    ; x
    s_load_dwordx2 s[20:21], s[0:1], 72   ; out
    s_load_dwordx2 s[24:25], s[0:1], 64   ; Dskip
    """)
    a(WG_DECODE)
    a("""
    s_cmp_lt_u32 s28, 4
    s_cbranch_scc1 K2_MAIN
    s_sub_u32 s28, s28, 4
    v_lshrrev_b32 v7, 4, v0
    v_xor_b32 v7, v7, v0
    v_and_b32 v7, 7, v7
    v_lshlrev_b32 v7, 4, v7
    v_lshrrev_b32 v8, 3, v0
    v_lshl_add_u32 v1, v8, 12, v7
    v_xor_b32 v2, 64, v1
    v_add_u32 v2, 0x8000, v2
    v_add_u32 v3, 0x10000, v1
    v_add_u32 v4, 0x10000, v2
    v_lshl_add_u32 v5, v8, 11, v7
    v_xor_b32 v6, 64, v5
    v_add_u32 v6, 0x4000, v6
    s_lshl_b32 s32, s30, 19
    s_lshl_b32 s33, s28, 17
    s_add_u32 s32, s32, s33
    s_add_u32 s36, s32, 2048
    s_lshl_b32 s33, s31, 17
    s_lshl_b32 s34, s28, 15
    s_add_u32 s33, s33, s34
    s_lshl_b32 s34, s28, 12
    s_lshl_b32 s38, s28, 11
    s_waitcnt lgkmcnt(0)
    """)
    srd(a, 4, L * 2048 * 2)
    srd(a, 8, D * P * 2)
    srd(a, 12, D * P * 2)
    for b in range(2):
        k2_dma_stage(a, b)
    a("s_mov_b32 s35, 4")
    a.label("K2_PLOOP")
    for b in range(3):
        a("s_waitcnt vmcnt(12)")
        a("s_barrier")
        k2_dma_stage(a, (b + 2) % 3)
    a("""
    s_sub_u32 s35, s35, 1
    s_cmp_lg_u32 s35, 0
    s_cbranch_scc1 K2_PLOOP
    """)
    for b in range(2):
        a("s_waitcnt vmcnt(12)")
        a("s_barrier")
        k2_dma_stage(a, (b + 2) % 3)
    a("""
    s_waitcnt vmcnt(12)
    s_barrier
    s_waitcnt vmcnt(0)
    s_barrier
    s_endpgm
    """)
    a.label("K2_MAIN")
    a("""
    s_and_b32 s26, s28, 1              ; wm
    s_lshr_b32 s27, s28, 1             ; kh
    v_and_b32 v14, 31, v0
    v_lshrrev_b32 v15, 5, v0
    """)
    if K2M16:
        a("""
        v_and_b32 v14, 15, v0
        v_lshrrev_b32 v15, 4, v0
        """)
    a("""
    v_lshrrev_b32 v7, 1, v14
    v_and_b32 v7, 7, v7
    v_xor_b32 v7, v15, v7
    v_lshlrev_b32 v7, 4, v7
    s_lshl_b32 s29, s27, 14
    s_lshl_b32 s32, s26, 13
    s_add_u32 s29, s29, s32
    v_lshlrev_b32 v8, 7, v14
    v_add3_u32 v144, v8, v7, s29
    s_lshl_b32 s29, s27, 13
    s_add_u32 s29, s29, 32768
    v_add3_u32 v148, v8, v7, s29
    """)
    for ks in range(1, 4):
        kx = 64 * ks if K2M16 else 32 * ks
        a(f"v_xor_b32 v{144+ks}, {kx & 127}, v144")
        a(f"v_xor_b32 v{148+ks}, {kx & 127}, v148")
    for b in range(1, 3):
        for i in range(8):
            a(f"v_add_u32 v{144+8*b+i}, {b*K2_STAGE}, v{144+i}")
    a("s_waitcnt lgkmcnt(0)")
    srd(a, 16, L * D * 2)
    srd(a, 20, L * D * 4)
    stamp(a, 0, 4, 1)
    a("""
    v_lshrrev_b32 v16, 4, v0
    v_and_b32 v17, 15, v0
    v_lshlrev_b32 v18, 11, v16
    v_lshl_add_u32 v18, v17, 3, v18
    s_lshl_b32 s29, s30, 18
    s_lshl_b32 s37, s28, 16
    s_add_u32 s29, s29, s37
    s_lshl_b32 s37, s31, 7
    s_add_u32 s29, s29, s37
    v_lshlrev_b32 v19, 3, v17
    v_add_u32 v19, s37, v19
    global_load_dwordx2 v[20:21], v19, s[24:25]
    """)
    for i in range(8):
        a(f"buffer_load_dwordx2 v[{128+2*i}:{129+2*i}], v18, s[16:19], s29 offen")
        if i < 7:
            a("s_add_u32 s29, s29, 8192")
    for r in range(64, 128):
        a(f"v_mov_b32 v{r}, 0")

    sets = [(32, 36, 40, 44), (48, 52, 56, 60)]
    ACC = [[64, 80], [96, 112]]

    def stage16(b):
        a("s_barrier")
        FS = [32, 168]

        def rd(ks, f):
            va = 144 + 8 * b + ks
            vb = 148 + 8 * b + ks
            for i in range(4):
                a(f"ds_read_b128 v[{f+4*i}:{f+4*i+3}], v{va} offset:{2048*i}")
                a(f"ds_read_b128 v[{f+16+4*i}:{f+16+4*i+3}], v{vb} offset:{2048*i}")

        def mf(f):
            for i in range(4):
                for j in range(4):
                    acc = 64 + 16 * i + 4 * j
                    a(f"v_mfma_f32_16x16x32_bf16 v[{acc}:{acc+3}], v[{f+4*i}:{f+4*i+3}], v[{f+16+4*j}:{f+16+4*j+3}], v[{acc}:{acc+3}]")
        rd(0, FS[0])
        rd(1, FS[1])
        a("s_waitcnt lgkmcnt(8)")
        mf(FS[0])
        a("s_waitcnt lgkmcnt(0)")
        mf(FS[1])

    def stage(b):
        if K2M16:
            return stage16(b)
        a("s_barrier")

        def rd(ks, s):
            if NOCOMP > 1:
                return
            A0, A1, B0, B1 = s
            va = 144 + 8 * b + ks
            vb = 148 + 8 * b + ks
            a(f"ds_read_b128 v[{A0}:{A0+3}], v{va}")
            a(f"ds_read_b128 v[{B0}:{B0+3}], v{vb}")
            a(f"ds_read_b128 v[{B1}:{B1+3}], v{vb} offset:4096")
            a(f"ds_read_b128 v[{A1}:{A1+3}], v{va} offset:4096")

        def mf(s):
            A0, A1, B0, B1 = s
            mfma(a, ACC[0][0], A0, B0)
            mfma(a, ACC[0][1], A0, B1)
            mfma(a, ACC[1][0], A1, B0)
            mfma(a, ACC[1][1], A1, B1)
        compute_stage(a, rd, mf, sets)

    stamp(a, 1, 4, 1)
    a("s_mov_b32 s35, 5")
    a.label("K2_LOOP")
    for b in range(3):
        stage(b)
    a("""
    s_sub_u32 s35, s35, 1
    s_cmp_lg_u32 s35, 0
    s_cbranch_scc1 K2_LOOP
    """)
    stage(0)
    a("s_nop 15")
    a("s_nop 3")
    stamp(a, 2, 4, 1)
    a("""
    s_barrier
    s_lshl_b32 s29, s27, 15
    s_lshl_b32 s37, s26, 14
    s_add_u32 s29, s29, s37
    v_lshlrev_b32 v1, 10, v15
    v_lshl_add_u32 v1, v14, 2, v1
    v_add_u32 v1, s29, v1
    """)
    if K2M16:
        for i in range(4):
            for j in range(4):
                for r in range(4):
                    a(f"ds_write_b32 v1, v{64+16*i+4*j+r} offset:{(16*i + r)*256 + j*64}")
    else:
      for rb in range(2):
        for nb in range(2):
            for r in range(16):
                off = (32 * rb + (r & 3) + 8 * (r >> 2)) * 256 + nb * 128
                a(f"ds_write_b32 v1, v{ACC[rb][nb]+r} offset:{off}")
    a("""
    s_lshl_b32 s29, s28, 13
    v_lshlrev_b32 v2, 8, v16
    v_lshl_add_u32 v2, v17, 4, v2
    v_add_u32 v2, s29, v2
    v_lshlrev_b32 v3, 12, v16
    v_lshl_add_u32 v3, v17, 4, v3
    s_lshl_b32 s29, s30, 19
    s_lshl_b32 s37, s28, 17
    s_add_u32 s29, s29, s37
    s_lshl_b32 s37, s31, 8
    s_add_u32 s29, s29, s37
    s_waitcnt vmcnt(0)
    v_lshlrev_b32 v22, 16, v20
    v_and_b32 v23, 0xffff0000, v20
    v_lshlrev_b32 v24, 16, v21
    v_and_b32 v25, 0xffff0000, v21
    """)
    for i in range(8):
        xr = 128 + 2 * i
        S = 32 + 4 * i
        a(f"""
        v_lshlrev_b32 v{S}, 16, v{xr}
        v_and_b32 v{S+1}, 0xffff0000, v{xr}
        v_lshlrev_b32 v{S+2}, 16, v{xr+1}
        v_and_b32 v{S+3}, 0xffff0000, v{xr+1}
        v_mul_f32 v{S}, v{S}, v22
        v_mul_f32 v{S+1}, v{S+1}, v23
        v_mul_f32 v{S+2}, v{S+2}, v24
        v_mul_f32 v{S+3}, v{S+3}, v25
        v_cvt_pk_bf16_f32 v{S}, v{S}, v{S+1}
        v_cvt_pk_bf16_f32 v{S+2}, v{S+2}, v{S+3}
        v_and_b32 v{S+1}, 0xffff0000, v{S}
        v_lshlrev_b32 v{S}, 16, v{S}
        v_and_b32 v{S+3}, 0xffff0000, v{S+2}
        v_lshlrev_b32 v{S+2}, 16, v{S+2}
        """)
    a("""
    s_waitcnt lgkmcnt(0)
    s_barrier
    """)
    for i in range(8):
        a(f"ds_read_b128 v[{64+8*i}:{67+8*i}], v2 offset:{i*1024}")
        a(f"ds_read_b128 v[{68+8*i}:{71+8*i}], v2 offset:{32768 + i*1024}")
    for i in range(8):
        A = 64 + 8 * i
        S = 32 + 4 * i
        a(f"""
        s_waitcnt lgkmcnt({14-2*i})
        v_pk_add_f32 v[{A}:{A+1}], v[{A}:{A+1}], v[{A+4}:{A+5}]
        v_pk_add_f32 v[{A+2}:{A+3}], v[{A+2}:{A+3}], v[{A+6}:{A+7}]
        v_pk_add_f32 v[{A}:{A+1}], v[{A}:{A+1}], v[{S}:{S+1}]
        v_pk_add_f32 v[{A+2}:{A+3}], v[{A+2}:{A+3}], v[{S+2}:{S+3}]
        buffer_store_dwordx4 v[{A}:{A+3}], v3, s[20:23], s29 offen {OSC}
        s_add_u32 s29, s29, 16384
        """)
    if STAMP:
        a("s_waitcnt vmcnt(0)")
    stamp(a, 3, 4, 1)
    a.label("K2_END")
    a("s_endpgm")


HEADER = """; S5 SSM (GEMM -> diagonal complex scan -> GEMM), generated by work/gen4.py (hand-designed schedule)
; @launch kernel=ssm_k1_kernel grid=(256,1,1) block=(512,1,1) lds={k1lds}
; @launch kernel=ssm_k2_kernel grid=(256,1,1) block=(512,1,1) lds={k2lds}
.amdgcn_target "amdgcn-amd-amdhsa--gfx950"
.text
"""

KD = """
.amdhsa_kernel {name}
  .amdhsa_next_free_vgpr {vgpr}
  .amdhsa_next_free_sgpr 64
  .amdhsa_accum_offset {vgpr}
  .amdhsa_group_segment_fixed_size 0
  .amdhsa_kernarg_size 96
  .amdhsa_user_sgpr_count 2
  .amdhsa_user_sgpr_kernarg_segment_ptr 1
  .amdhsa_system_sgpr_workgroup_id_x 1
  .amdhsa_float_denorm_mode_32 3
  .amdhsa_float_denorm_mode_16_64 3
.end_amdhsa_kernel
"""


def main():
    out = HEADER.format(k1lds=K1_LDS, k2lds=K2_LDS)
    a = Asm()
    a.lines.append(".globl ssm_k1_kernel\n.p2align 8\n.type ssm_k1_kernel,@function")
    gen_k1(a)
    a.lines.append(".globl ssm_k2_kernel\n.p2align 8\n.type ssm_k2_kernel,@function")
    gen_k2(a)
    out += a.text()
    out += '.section .rodata,"a"\n.p2align 6\n'
    out += KD.format(name="ssm_k1_kernel", vgpr=256)
    out += ".p2align 6\n"
    out += KD.format(name="ssm_k2_kernel", vgpr=256 if STAMP else (200 if K2M16 else 168))
    path = sys.argv[1] if len(sys.argv) > 1 else "standalone__ssm_conv_s5__prompt.s"
    open(path, "w").write(out)
    print("wrote", path, len(out))


if __name__ == "__main__":
    main()
```

```python
import sys, os


def env(name, default=0):
    return int(os.environ.get(name, str(default)))


NOCOMP, NODMA, STAMP = env("NOCOMP"), env("NODMA"), env("STAMP")
PF1, PFC = env("PF1", 0), env("PFC", 1)
HSC, OSC = os.environ.get("HSC", "sc1"), os.environ.get("OSC", "sc1")
K2M16 = env("K2M16", 1)
ROT1, ROT2 = env("ROT1", 0), env("ROT2", 0)

L, D, P = 2048, 1024, 1024
WS_AGG = 8 << 20
WS_STAMP = 16 << 20


class Asm:
    def __init__(self):
        self.lines = []

    def __call__(self, s=""):
        for ln in s.strip("\n").split("\n"):
            t = ln.strip()
            self.lines.append(("    " + t) if t else "")

    def label(self, s):
        self.lines.append(s + ":")

    def text(self):
        return "\n".join(self.lines) + "\n"


def stamp(a, idx, wsreg, kern):
    if not STAMP:
        return
    for nm, off, ins in (("ST", idx, "s_memrealtime"), ("SU", 8 + idx, "s_memtime")):
        a(f"""
        {ins} s[44:45]
        s_lshl_b32 s46, s2, 7
        s_add_u32 s46, s46, {WS_STAMP + off*8 + kern*65536}
        s_waitcnt lgkmcnt(0)
        v_mov_b32 v254, s44
        v_mov_b32 v255, s45
        v_mov_b32 v253, s46
        s_cmp_lg_u32 s28, 0
        s_cbranch_scc1 {nm}_{kern}_{idx}
        v_cmp_eq_u32 vcc, 0, v0
        s_and_saveexec_b64 s[46:47], vcc
        global_store_dwordx2 v253, v[254:255], s[{wsreg}:{wsreg+1}]
        s_mov_b64 exec, s[46:47]
        """)
        a.label(f"{nm}_{kern}_{idx}")


def srd(a, d, nbytes):
    a(f"s_and_b32 s{d+1}, s{d+1}, 0xffff")
    a(f"s_mov_b32 s{d+2}, {nbytes}")
    a(f"s_mov_b32 s{d+3}, 0x00020000")


def mfma(a, acc, A, B):
    if NOCOMP:
        return
    a(f"v_mfma_f32_32x32x16_bf16 v[{acc}:{acc+15}], v[{A}:{A+3}], v[{B}:{B+3}], v[{acc}:{acc+15}]")


LOG2E_HI, LOG2E_LO, LN2 = 0x3fb8aa3b, 0x32a57060, 0x3f317218


def exp_f32(a, dst, src, t0, t1, sA, sB):
    a(f"""
    s_mov_b32 s{sA}, {LOG2E_HI:#x}
    s_mov_b32 s{sB}, {LOG2E_LO:#x}
    v_mul_f32 v{t0}, s{sA}, v{src}
    v_fma_f32 v{t1}, v{src}, s{sA}, -v{t0}
    v_fma_f32 v{t1}, v{src}, s{sB}, v{t1}
    v_exp_f32 v{t0}, v{t0}
    s_mov_b32 s{sA}, {LN2:#x}
    v_mul_f32 v{t1}, s{sA}, v{t1}
    s_nop 0
    v_fma_f32 v{dst}, v{t0}, v{t1}, v{t0}
    """)


def csq(a, dr, di, sr, si, t):
    a(f"""
    v_mul_f32 v{t}, v{si}, v{si}
    v_fma_f32 v{dr}, v{sr}, v{sr}, -v{t}
    v_add_f32 v{t}, v{sr}, v{sr}
    v_mul_f32 v{di}, v{t}, v{si}
    """)


def cfma(a, dr, di, ar, ai, br, bi, cr, ci):
    a(f"""
    v_fma_f32 v{dr}, v{ar}, v{br}, v{cr}
    v_fma_f32 v{di}, v{ar}, v{bi}, v{ci}
    v_fma_f32 v{dr}, -v{ai}, v{bi}, v{dr}
    v_fma_f32 v{di}, v{ai}, v{br}, v{di}
    """)


WG_DECODE = """
    s_and_b32 s26, s2, 7
    s_lshr_b32 s27, s2, 3
    s_and_b32 s30, s26, 3
    s_lshl_b32 s30, s30, 2
    s_and_b32 s31, s27, 3
    s_add_u32 s30, s30, s31            ; s30 = chunk
    s_lshr_b32 s31, s26, 2
    s_lshl_b32 s31, s31, 3
    s_lshr_b32 s27, s27, 2
    s_add_u32 s31, s31, s27
    v_lshrrev_b32 v1, 6, v0
    v_and_b32 v0, 63, v0               ; v0 = lane
    v_readfirstlane_b32 s28, v1        ; s28 = wave
    s_nop 3
"""


def compute_stage(a, rd, mf, sets):
    rd(0, sets[0])
    for ks in range(4):
        if ks < 3:
            rd(ks + 1, sets[(ks + 1) & 1])
            a("s_waitcnt lgkmcnt(4)")
        else:
            a("s_waitcnt lgkmcnt(0)")
        mf(sets[ks & 1])


def dma(a, m0base, m0off, voff, srdr, soff):
    a(f"s_add_u32 m0, s{m0base}, {m0off}")
    a("s_nop 0")
    a(f"buffer_load_dwordx4 v{voff}, s[{srdr}:{srdr+3}], s{soff} offen lds")


K1_STAGE, K1_NB = 32768, 4
K1_AGG = K1_STAGE * K1_NB
K1_LDS = K1_AGG + 2048
K1_PB = 272


def k1_dma_stage(a, b):
    if NODMA:
        return
    base = b * K1_STAGE
    if ROT1:
        a("s_add_u32 s32, s44, s46")
        a("s_add_u32 s33, s45, s46")
    for j in range(4):
        dma(a, 34, base + j * 1024, 1 + j, 4, 32)
    for j in range(2):
        dma(a, 38, base + 16384 + j * 1024, 1 + j, 8, 33)
    for j in range(2):
        dma(a, 38, base + 24576 + j * 1024, 1 + j, 12, 33)
    if ROT1:
        a("s_add_u32 s46, s46, 128")
        a("s_and_b32 s46, s46, 2047")
    else:
        a("s_add_u32 s32, s32, 128")
        a("s_add_u32 s33, s33, 128")


def gen_k1(a):
    a.label("ssm_k1_kernel")
    a("""
    s_cmp_ge_u32 s2, 256
    s_cbranch_scc1 K1_END
    s_load_dwordx2 s[4:5], s[0:1], 0
    s_load_dwordx2 s[8:9], s[0:1], 24
    s_load_dwordx2 s[12:13], s[0:1], 32
    s_load_dwordx2 s[16:17], s[0:1], 88
    s_load_dwordx2 s[18:19], s[0:1], 80
    s_load_dwordx2 s[20:21], s[0:1], 8
    s_load_dwordx2 s[22:23], s[0:1], 16
    s_load_dwordx2 s[24:25], s[0:1], 56
    s_load_dwordx2 s[40:41], s[0:1], 40
    s_load_dwordx2 s[42:43], s[0:1], 48
    """)
    a(WG_DECODE)
    a("""
    s_cmp_lt_u32 s28, 4
    s_cbranch_scc1 K1_MAIN
    s_sub_u32 s28, s28, 4
    v_lshrrev_b32 v1, 3, v0
    v_lshlrev_b32 v1, 11, v1
    v_lshrrev_b32 v2, 4, v0
    v_xor_b32 v2, v2, v0
    v_and_b32 v2, 7, v2
    v_lshlrev_b32 v2, 4, v2
    v_add_u32 v1, v1, v2
    v_xor_b32 v2, 64, v1
    v_add_u32 v2, 0x4000, v2
    v_add_u32 v3, 0x8000, v1
    v_add_u32 v4, 0x8000, v2
    s_lshl_b32 s32, s30, 18
    s_lshl_b32 s33, s28, 16
    s_add_u32 s32, s32, s33
    s_lshl_b32 s33, s31, 17
    s_lshl_b32 s34, s28, 15
    s_add_u32 s33, s33, s34
    s_lshl_b32 s34, s28, 12
    s_lshl_b32 s38, s28, 11
    s_mov_b32 s44, s32
    s_mov_b32 s45, s33
    s_lshr_b32 s46, s2, 3
    s_and_b32 s46, s46, 15
    s_lshl_b32 s46, s46, 7
    s_waitcnt lgkmcnt(0)
    """)
    srd(a, 4, L * D * 2)
    srd(a, 8, P * D * 2)
    srd(a, 12, P * D * 2)
    for b in range(3):
        k1_dma_stage(a, b)
    a("s_mov_b32 s35, 3")
    a.label("K1_PLOOP")
    for b in range(4):
        a("s_waitcnt vmcnt(16)")
        a("s_barrier")
        k1_dma_stage(a, (b + 3) % 4)
    a("""
    s_sub_u32 s35, s35, 1
    s_cmp_lg_u32 s35, 0
    s_cbranch_scc1 K1_PLOOP
    s_waitcnt vmcnt(16)
    s_barrier
    """)
    k1_dma_stage(a, 3)
    a("""
    s_waitcnt vmcnt(16)
    s_barrier
    s_waitcnt vmcnt(8)
    s_barrier
    s_waitcnt vmcnt(0)
    s_barrier
    s_endpgm
    """)

    a.label("K1_MAIN")
    a("""
    s_lshr_b32 s26, s28, 1             ; wr
    s_and_b32 s27, s28, 1              ; wc
    v_and_b32 v7, 31, v0               ; n / m
    v_lshrrev_b32 v8, 5, v0            ; hb
    s_lshl_b32 s29, s31, 6
    s_lshl_b32 s32, s27, 5
    s_add_u32 s29, s29, s32
    v_add_u32 v9, s29, v7
    v_lshlrev_b32 v9, 1, v9
    v_mov_b32 v244, 0
    s_waitcnt lgkmcnt(0)
    s_mov_b32 s48, s4
    s_mov_b32 s49, s5
    """)
    stamp(a, 0, 16, 0)
    a(f"""
    global_load_ushort v10, v9, s[20:21]
    global_load_ushort v11, v9, s[22:23]
    global_load_ushort v12, v9, s[24:25]
    s_cmp_lg_u32 s28, 0
    s_cbranch_scc1 K1_NOCLR
    s_lshl_b32 s29, s31, 14
    s_lshl_b32 s32, s30, 10
    s_add_u32 s29, s29, s32
    s_add_u32 s29, s29, {WS_AGG}
    v_lshlrev_b32 v1, 4, v0
    v_add_u32 v1, s29, v1
    v_mov_b32 v32, 0
    v_mov_b32 v33, 0
    v_mov_b32 v34, 0
    v_mov_b32 v35, 0
    s_lshl_b32 s29, s31, 2
    v_mov_b32 v2, s29
    v_mov_b32 v3, 1
    global_store_dwordx4 v1, v[32:35], s[16:17] sc1
    s_waitcnt vmcnt(1)
    """)
    a("s_branch K1_CLRD")
    a.label("K1_NOCLR")
    if PF1 == 3:
        a("""
        v_lshlrev_b32 v1, 7, v0
        s_cmp_eq_u32 s28, 1
        s_cbranch_scc0 K1_PF3B
        s_lshl_b32 s29, s2, 14
        v_add_u32 v1, s29, v1
        v_add_u32 v2, 0x2000, v1
        global_load_dword v240, v1, s[4:5]
        global_load_dword v241, v2, s[4:5]
        s_waitcnt vmcnt(2)
        s_branch K1_CLRD
        """)
        a.label("K1_PF3B")
        a("""
        s_lshl_b32 s29, s2, 13
        v_add_u32 v1, s29, v1
        s_cmp_eq_u32 s28, 2
        s_cbranch_scc0 K1_PF3C
        global_load_dword v240, v1, s[8:9]
        s_waitcnt vmcnt(1)
        s_branch K1_CLRD
        """)
        a.label("K1_PF3C")
        a("""
        global_load_dword v240, v1, s[12:13]
        s_waitcnt vmcnt(1)
        """)
    elif PF1:
        a("""
        s_lshr_b32 s29, s2, 3
        s_lshl_b32 s29, s29, 4             ; 16*j
        s_and_b32 s32, s2, 3
        s_bfe_u32 s33, s2, 0x10002
        s_cmp_eq_u32 s28, 1
        s_cselect_b32 s32, s32, s33
        s_lshl_b32 s32, s32, 9
        s_add_u32 s29, s29, s32
        v_and_b32 v1, 15, v0
        v_add_u32 v1, s29, v1
        v_lshlrev_b32 v1, 11, v1
        v_lshrrev_b32 v2, 4, v0
        v_lshl_add_u32 v1, v2, 7, v1
        s_cmp_eq_u32 s28, 2
        s_cbranch_scc1 K1_PFB
        s_cmp_eq_u32 s28, 3
        s_cbranch_scc1 K1_PFBI
        """)
        blocks = range(4) if PF1 == 1 else [1]
        a("s_mov_b32 s48, s4")
        a("s_mov_b32 s49, s5")
        a("s_branch K1_PFD")
        a.label("K1_PFB")
        a("s_mov_b32 s48, s8")
        a("s_mov_b32 s49, s9")
        a("s_branch K1_PFD")
        a.label("K1_PFBI")
        a("s_mov_b32 s48, s12")
        a("s_mov_b32 s49, s13")
        a.label("K1_PFD")
        for i in blocks:
            a(f"global_load_dword v{240+i}, v1, s[48:49] offset:{i*512}")
        a("v_add_u32 v244, 1024, v1")
        a(f"s_waitcnt vmcnt({len(blocks)})")
    else:
        a("s_waitcnt vmcnt(0)")
    a.label("K1_CLRD")
    a("""
    v_lshrrev_b32 v1, 2, v7
    v_and_b32 v1, 1, v1
    v_lshlrev_b32 v1, 5, v1
    v_and_b32 v2, 3, v7
    v_add_u32 v1, v1, v2
    v_lshrrev_b32 v2, 3, v7
    v_lshlrev_b32 v2, 2, v2
    v_add_u32 v1, v1, v2
    s_lshl_b32 s29, s26, 6
    v_add_u32 v1, s29, v1
    v_lshrrev_b32 v2, 1, v1
    v_and_b32 v2, 7, v2
    v_xor_b32 v2, v8, v2
    v_lshlrev_b32 v2, 4, v2
    v_lshl_add_u32 v192, v1, 7, v2
    s_lshl_b32 s29, s27, 5
    v_add_u32 v1, s29, v7
    v_lshrrev_b32 v2, 1, v1
    v_and_b32 v2, 7, v2
    v_xor_b32 v2, v8, v2
    v_lshlrev_b32 v2, 4, v2
    v_lshl_add_u32 v196, v1, 7, v2
    v_add_u32 v196, 0x4000, v196
    """)
    for ks in range(1, 4):
        a(f"v_xor_b32 v{192+ks}, {32*ks}, v192")
        a(f"v_xor_b32 v{196+ks}, {32*ks}, v196")
    for i in range(8):
        a(f"v_add_u32 v{200+i}, 0x10000, v{192+i}")
    for r in range(64, 128):
        a(f"v_mov_b32 v{r}, 0")
    a("""
    v_lshlrev_b32 v10, 16, v10
    v_lshlrev_b32 v11, 16, v11
    v_lshlrev_b32 v12, 16, v12
    """)
    exp_f32(a, 13, 12, 14, 15, 36, 37)
    a("""
    v_cvt_pk_bf16_f32 v13, v13, v13
    v_lshlrev_b32 v13, 16, v13
    v_mul_f32 v14, v13, v10
    v_mul_f32 v15, v13, v11
    """)
    exp_f32(a, 16, 14, 17, 18, 36, 37)
    a("""
    v_mul_f32 v17, 0.15915494, v15
    v_fract_f32 v17, v17
    v_sin_f32 v18, v17
    v_cos_f32 v19, v17
    s_nop 0
    v_mul_f32 v20, v16, v19            ; Lr
    v_mul_f32 v21, v16, v18            ; Li
    v_sub_f32 v22, 0, v21              ; -Li
    v_add_f32 v13, -1.0, v20
    v_mul_f32 v14, v13, v10
    v_fma_f32 v14, v21, v11, v14
    v_mul_f32 v15, v21, v10
    v_fma_f32 v15, -v13, v11, v15
    v_mul_f32 v16, v10, v10
    v_fma_f32 v16, v11, v11, v16
    v_rcp_f32 v17, v16
    s_nop 0
    v_fma_f32 v18, -v16, v17, 1.0
    v_fma_f32 v17, v17, v18, v17
    v_mul_f32 v23, v14, v17            ; cr
    v_mul_f32 v24, v15, v17            ; ci
    v_mul_f32 v25, v23, v20
    v_fma_f32 v25, -v24, v21, v25
    v_mul_f32 v26, v23, v21
    v_fma_f32 v26, v24, v20, v26       ; q (im)
    v_add_f32 v208, v23, v23           ; (2cr,2cr)
    v_add_f32 v209, v23, v23
    v_mul_f32 v210, -2.0, v24          ; (-2ci,-2ci)
    v_mul_f32 v211, -2.0, v24
    v_mul_f32 v212, -2.0, v23          ; (-2cr,-2cr)
    v_mul_f32 v213, -2.0, v23
    """)
    csq(a, 13, 14, 20, 21, 17)
    a("""
    v_mov_b32 v214, v13                ; (L2r,L2r)
    v_mov_b32 v215, v13
    v_mov_b32 v216, v14                ; (L2i,L2i)
    v_mov_b32 v217, v14
    v_sub_f32 v218, 0, v14             ; (-L2i,-L2i)
    v_sub_f32 v219, 0, v14
    """)
    csq(a, 15, 16, 13, 14, 17)
    csq(a, 13, 14, 15, 16, 17)
    csq(a, 15, 16, 13, 14, 17)
    csq(a, 27, 28, 15, 16, 17)
    csq(a, 13, 14, 27, 28, 17)
    csq(a, 29, 30, 13, 14, 17)

    ACC = [[64, 80], [96, 112]]
    sets = [(32, 36, 40, 44), (48, 52, 56, 60)]

    def stage(b):
        a("s_barrier")

        def rd(ks, s):
            if NOCOMP > 1:
                return
            A0, A1, B0, B1 = s
            va = (192 if b < 2 else 200) + ks
            vb = (196 if b < 2 else 204) + ks
            base = (b & 1) * K1_STAGE
            a(f"ds_read_b128 v[{A0}:{A0+3}], v{va} offset:{base}")
            a(f"ds_read_b128 v[{B0}:{B0+3}], v{vb} offset:{base}")
            a(f"ds_read_b128 v[{B1}:{B1+3}], v{vb} offset:{base + 8192}")
            a(f"ds_read_b128 v[{A1}:{A1+3}], v{va} offset:{base + 2048}")

        def mf(s):
            A0, A1, B0, B1 = s
            mfma(a, ACC[0][0], A0, B0)
            mfma(a, ACC[0][1], A0, B1)
            mfma(a, ACC[1][0], A1, B0)
            mfma(a, ACC[1][1], A1, B1)
        compute_stage(a, rd, mf, sets)

    stamp(a, 1, 16, 0)
    a("s_mov_b32 s35, 4")
    a.label("K1_LOOP")
    a("""
    s_cmp_lg_u32 s28, 0
    s_cbranch_scc1 K1_NOSIG
    s_cmp_lg_u32 s35, 3
    s_cbranch_scc1 K1_NOSIG
    s_lshl_b32 s29, s31, 2
    v_mov_b32 v247, s29
    v_mov_b32 v248, 1
    s_waitcnt vmcnt(0)
    v_cmp_eq_u32 vcc, 0, v0
    s_and_saveexec_b64 s[36:37], vcc
    global_atomic_add v247, v248, s[18:19]
    s_mov_b64 exec, s[36:37]
    """)
    if PFC:
        a("""
        s_lshl_b32 s29, s2, 13
        v_lshlrev_b32 v1, 7, v0
        v_add_u32 v1, s29, v1
        global_load_dword v245, v1, s[40:41]
        global_load_dword v246, v1, s[42:43]
        """)
    a.label("K1_NOSIG")
    if PF1 == 2:
        a("""
        s_cmp_eq_u32 s28, 0
        s_cbranch_scc1 K1_LPF
        s_cmp_lt_u32 s35, 3
        s_cbranch_scc1 K1_LPF
        global_load_dword v240, v244, s[48:49]
        v_add_u32 v244, 512, v244
        """)
        a.label("K1_LPF")
    for b in range(4):
        stage(b)
    a("""
    s_sub_u32 s35, s35, 1
    s_cmp_lg_u32 s35, 0
    s_cbranch_scc1 K1_LOOP
    s_nop 15
    s_nop 3
    """)
    stamp(a, 2, 16, 0)

    def gr(t):
        return ACC[t // 16][0] + (t % 16)

    def gi(t):
        return ACC[t // 16][1] + (t % 16)

    a("""
    s_lshl_b32 s29, s31, 2
    v_mov_b32 v34, s29
    global_load_dword v35, v34, s[18:19] sc1
    """)
    for t in range(1, 32):
        a(f"v_fmac_f32 v{gr(t)}, v20, v{gr(t-1)}")
        a(f"v_fmac_f32 v{gi(t)}, v20, v{gi(t-1)}")
        a(f"v_fmac_f32 v{gr(t)}, v22, v{gi(t-1)}")
        a(f"v_fmac_f32 v{gi(t)}, v21, v{gr(t-1)}")
    a(f"""
    s_lshl_b32 s29, s27, 5
    v_add_u32 v9, s29, v7
    v_lshlrev_b32 v10, 3, v9
    v_add_u32 v10, {K1_AGG}, v10
    s_lshl_b32 s29, s26, 1
    v_add_u32 v11, s29, v8
    v_lshlrev_b32 v11, 9, v11
    v_add_u32 v11, v11, v10
    ds_write2_b32 v11, v{gr(31)}, v{gi(31)} offset0:0 offset1:1
    s_mov_b32 s35, 0x40000
    """)
    a.label("K1_POLL")
    a("""
    s_waitcnt vmcnt(0)
    v_readfirstlane_b32 s29, v35
    s_nop 3
    s_cmp_ge_u32 s29, 16
    s_cbranch_scc1 K1_POLL_DONE
    s_sub_u32 s35, s35, 1
    s_cmp_eq_u32 s35, 0
    s_cbranch_scc1 K1_POLL_DONE
    s_sleep 2
    global_load_dword v35, v34, s[18:19] sc1
    s_branch K1_POLL
    """)
    a.label("K1_POLL_DONE")
    stamp(a, 3, 16, 0)
    a(f"""
    s_waitcnt lgkmcnt(0)
    s_barrier
    ds_read_b64 v[12:13], v10
    ds_read_b64 v[14:15], v10 offset:512
    ds_read_b64 v[16:17], v10 offset:1024
    ds_read_b64 v[18:19], v10 offset:1536
    s_lshl_b32 s29, s31, 14
    s_add_u32 s29, s29, {WS_AGG}
    v_lshlrev_b32 v9, 4, v9
    v_add_u32 v9, s29, v9
    s_lshl_b32 s29, s30, 10
    v_add_u32 v11, s29, v9
    s_waitcnt lgkmcnt(0)
    """)
    cfma(a, 36, 37, 12, 13, 27, 28, 14, 15)
    cfma(a, 38, 39, 36, 37, 27, 28, 16, 17)
    cfma(a, 32, 34, 38, 39, 27, 28, 18, 19)
    a("""
    v_mov_b32 v33, -1
    v_mov_b32 v35, -1
    s_cmp_lg_u32 s26, 0
    s_cbranch_scc1 K1_NOPUB
    v_cmp_gt_u32 vcc, 32, v0
    s_and_saveexec_b64 s[36:37], vcc
    global_store_dwordx4 v11, v[32:35], s[16:17] sc1
    s_mov_b64 exec, s[36:37]
    """)
    a.label("K1_NOPUB")
    X, PI = 128, 160

    def xr(t):
        return X + t

    def pi_(t):
        return PI + t
    for t in range(0, 32, 2):
        a(f"v_pk_mul_f32 v[{xr(t)}:{xr(t)+1}], v[{gr(t)}:{gr(t)+1}], v[208:209]")
        a(f"v_pk_fma_f32 v[{xr(t)}:{xr(t)+1}], v[{gi(t)}:{gi(t)+1}], v[210:211], v[{xr(t)}:{xr(t)+1}]")
        a(f"v_pk_mul_f32 v[{gi(t)}:{gi(t)+1}], v[{gi(t)}:{gi(t)+1}], v[212:213]")
        a(f"v_pk_fma_f32 v[{gi(t)}:{gi(t)+1}], v[{gr(t)}:{gr(t)+1}], v[210:211], v[{gi(t)}:{gi(t)+1}]")
    a(f"""
    v_mov_b32 v{gr(0)}, 1.0
    v_mov_b32 v{gr(1)}, v20
    v_mov_b32 v{pi_(0)}, 0
    v_mov_b32 v{pi_(1)}, v22
    """)
    for t in range(2, 32, 2):
        pr0, pi0, pr1, pi1 = gr(t - 2), pi_(t - 2), gr(t), pi_(t)
        a(f"v_pk_mul_f32 v[{pr1}:{pr1+1}], v[{pr0}:{pr0+1}], v[214:215]")
        a(f"v_pk_mul_f32 v[{pi1}:{pi1+1}], v[{pi0}:{pi0+1}], v[214:215]")
        a(f"v_pk_fma_f32 v[{pr1}:{pr1+1}], v[{pi0}:{pi0+1}], v[216:217], v[{pr1}:{pr1+1}]")
        a(f"v_pk_fma_f32 v[{pi1}:{pi1+1}], v[{pr0}:{pr0+1}], v[218:219], v[{pi1}:{pi1+1}]")
    a("""
    v_mov_b32 v36, 0
    v_mov_b32 v37, 0
    s_cmp_eq_u32 s30, 0
    s_cbranch_scc1 K1_CARRY_DONE
    v_add_u32 v40, 0x1000, v9
    v_add_u32 v41, 0x2000, v9
    v_add_u32 v42, 0x3000, v9
    s_mov_b32 s35, 0x40000
    """)
    EB = 192
    a.label("K1_GPOLL")
    for cc in range(15):
        if cc > 0:
            a(f"s_cmp_le_u32 s30, {cc}")
            a("s_cbranch_scc1 K1_GP_ISSUED")
        vb = [9, 40, 41, 42][cc // 4]
        a(f"global_load_dwordx4 v[{EB+4*cc}:{EB+4*cc+3}], v{vb}, s[16:17] offset:{(cc%4)*1024} sc1")
    a.label("K1_GP_ISSUED")
    a("s_waitcnt vmcnt(0)")
    a("v_mov_b32 v38, -1")
    for cc in range(15):
        if cc > 0:
            a(f"s_cmp_le_u32 s30, {cc}")
            a("s_cbranch_scc1 K1_GP_CHECKED")
        a(f"v_and_b32 v38, v38, v{EB+4*cc+1}")
        a(f"v_and_b32 v38, v38, v{EB+4*cc+3}")
    a.label("K1_GP_CHECKED")
    a("""
    v_cmp_ne_u32 vcc, -1, v38
    s_cbranch_vccz K1_GP_DONE
    s_sub_u32 s35, s35, 1
    s_cmp_eq_u32 s35, 0
    s_cbranch_scc1 K1_GP_DONE
    s_sleep 1
    s_branch K1_GPOLL
    """)
    a.label("K1_GP_DONE")
    a(f"v_mov_b32 v36, v{EB}")
    a(f"v_mov_b32 v37, v{EB+2}")
    for cc in range(1, 15):
        a(f"s_cmp_le_u32 s30, {cc}")
        a("s_cbranch_scc1 K1_CARRY_DONE")
        cfma(a, 38, 39, 36, 37, 29, 30, EB + 4 * cc, EB + 4 * cc + 2)
        a("v_mov_b32 v36, v38")
        a("v_mov_b32 v37, v39")
    a.label("K1_CARRY_DONE")
    stamp(a, 4, 16, 0)
    cfma(a, 38, 39, 36, 37, 27, 28, 12, 13)
    cfma(a, 40, 41, 38, 39, 27, 28, 14, 15)
    cfma(a, 42, 43, 40, 41, 27, 28, 16, 17)
    a("""
    v_cmp_lt_u32 vcc, 31, v0
    s_cmp_lg_u32 s26, 0
    s_cbranch_scc1 K1_SEL_HI
    v_cndmask_b32 v44, v36, v38, vcc
    v_cndmask_b32 v45, v37, v39, vcc
    s_branch K1_SEL_DONE
    """)
    a.label("K1_SEL_HI")
    a("""
    s_nop 0
    v_cndmask_b32 v44, v40, v42, vcc
    v_cndmask_b32 v45, v41, v43, vcc
    """)
    a.label("K1_SEL_DONE")
    a("""
    v_mul_f32 v46, v25, v44
    v_fma_f32 v46, -v26, v45, v46
    v_mul_f32 v47, v25, v45
    v_fma_f32 v47, v26, v44, v47
    v_add_f32 v12, v46, v46
    v_add_f32 v13, v46, v46
    v_mul_f32 v14, -2.0, v47
    v_mul_f32 v15, -2.0, v47
    v_add_f32 v16, v47, v47
    v_add_f32 v17, v47, v47
    """)
    for j in range(16):
        t = 2 * j
        pr, pi = gr(t), pi_(t)
        a(f"v_pk_fma_f32 v[{xr(t)}:{xr(t)+1}], v[{pr}:{pr+1}], v[12:13], v[{xr(t)}:{xr(t)+1}]")
        a(f"v_pk_fma_f32 v[{gi(t)}:{gi(t)+1}], v[{pr}:{pr+1}], v[14:15], v[{gi(t)}:{gi(t)+1}]")
        a(f"v_pk_fma_f32 v[{xr(t)}:{xr(t)+1}], v[{pi}:{pi+1}], v[16:17], v[{xr(t)}:{xr(t)+1}]")
        a(f"v_pk_fma_f32 v[{gi(t)}:{gi(t)+1}], v[{pi}:{pi+1}], v[12:13], v[{gi(t)}:{gi(t)+1}]")
        a(f"v_cvt_pk_bf16_f32 v{32+j}, v{xr(t)}, v{xr(t)+1}")
        a(f"v_cvt_pk_bf16_f32 v{48+j}, v{gi(t)}, v{gi(t)+1}")
    PB = K1_PB
    a(f"""
    s_lshl_b32 s29, s27, 5
    v_add_u32 v9, s29, v7
    v_mul_u32_u24 v9, {PB}, v9
    s_lshl_b32 s29, s26, 7
    v_lshlrev_b32 v10, 6, v8
    v_add3_u32 v9, v9, v10, s29
    """)
    for i in range(4):
        a(f"ds_write_b128 v9, v[{32+4*i}:{35+4*i}] offset:{16*i}")
    for i in range(4):
        a(f"ds_write_b128 v9, v[{48+4*i}:{51+4*i}] offset:{64*PB + 16*i}")
    a(f"""
    v_lshrrev_b32 v10, 4, v0
    v_lshlrev_b32 v10, 3, v10
    v_lshrrev_b32 v11, 2, v0
    v_and_b32 v11, 3, v11
    v_add_u32 v10, v10, v11
    v_mul_u32_u24 v10, {PB}, v10
    v_and_b32 v11, 3, v0
    v_lshlrev_b32 v11, 3, v11
    s_lshl_b32 s29, s28, 6
    v_add3_u32 v10, v10, v11, s29
    v_and_b32 v11, 15, v0
    v_lshlrev_b32 v11, 12, v11
    v_lshrrev_b32 v12, 4, v0
    v_lshlrev_b32 v12, 4, v12
    v_add_u32 v11, v11, v12
    v_add_u32 v12, 0x10000, v11
    s_lshl_b32 s29, s30, 19
    s_lshl_b32 s35, s28, 17
    s_add_u32 s29, s29, s35
    s_lshl_b32 s35, s31, 7
    s_add_u32 s29, s29, s35
    s_mov_b32 s40, s16
    s_and_b32 s41, s17, 0xffff
    s_mov_b32 s42, {L*2048*2}
    s_mov_b32 s43, 0x00020000
    s_waitcnt lgkmcnt(0)
    s_barrier
    """)
    regs = []
    for j in range(2):
        for im in range(2):
            for q in range(2):
                r0 = 64 + 4 * len(regs)
                off = (64 * im + 32 * q) * PB + 32 * j
                a(f"ds_read_b64_tr_b16 v[{r0}:{r0+1}], v10 offset:{off}")
                a(f"ds_read_b64_tr_b16 v[{r0+2}:{r0+3}], v10 offset:{off + 4*PB}")
                regs.append((r0, j, im, q))
    for n_, (r0, j, im, q) in enumerate(regs):
        a(f"s_waitcnt lgkmcnt({2*(7-n_)})")
        va = 11 if j == 0 else 12
        a(f"buffer_store_dwordx4 v[{r0}:{r0+3}], v{va}, s[40:43], s29 offen offset:{im*2048 + q*64} {HSC}")
    if STAMP:
        a("s_waitcnt vmcnt(0)")
    stamp(a, 5, 16, 0)
    a.label("K1_END")
    a("s_endpgm")


K2_STAGE, K2_NB = 49152, 3
K2_LDS = K2_STAGE * K2_NB


def k2_dma_stage(a, b):
    if NODMA:
        return
    base = b * K2_STAGE
    if ROT2:
        a("s_add_u32 s32, s44, s46")
        a("s_add_u32 s33, s45, s46")
        a("s_add_u32 s36, s32, 2048")
    for j in range(4):
        dma(a, 34, base + j * 1024, 1 + j, 4, 32)
    for j in range(2):
        dma(a, 38, base + 32768 + j * 1024, 5 + j, 8, 33)
    for j in range(4):
        dma(a, 34, base + 16384 + j * 1024, 1 + j, 4, 36)
    for j in range(2):
        dma(a, 38, base + 40960 + j * 1024, 5 + j, 12, 33)
    if ROT2:
        a("s_add_u32 s46, s46, 128")
        a("s_and_b32 s46, s46, 2047")
    else:
        a("s_add_u32 s32, s32, 128")
        a("s_add_u32 s36, s36, 128")
        a("s_add_u32 s33, s33, 128")


def gen_k2(a):
    a.label("ssm_k2_kernel")
    a("""
    s_cmp_ge_u32 s2, 256
    s_cbranch_scc1 K2_END
    s_load_dwordx2 s[4:5], s[0:1], 88     ; ws (h')
    s_load_dwordx2 s[8:9], s[0:1], 40     ; C_re
    s_load_dwordx2 s[12:13], s[0:1], 48   ; C_im
    s_load_dwordx2 s[16:17], s[0:1], 0    ; x
    s_load_dwordx2 s[20:21], s[0:1], 72   ; out
    s_load_dwordx2 s[24:25], s[0:1], 64   ; Dskip
    """)
    a(WG_DECODE)
    a("""
    s_cmp_lt_u32 s28, 4
    s_cbranch_scc1 K2_MAIN
    s_sub_u32 s28, s28, 4
    v_lshrrev_b32 v7, 4, v0
    v_xor_b32 v7, v7, v0
    v_and_b32 v7, 7, v7
    v_lshlrev_b32 v7, 4, v7
    v_lshrrev_b32 v8, 3, v0
    v_lshl_add_u32 v1, v8, 12, v7
    v_xor_b32 v2, 64, v1
    v_add_u32 v2, 0x8000, v2
    v_add_u32 v3, 0x10000, v1
    v_add_u32 v4, 0x10000, v2
    v_lshl_add_u32 v5, v8, 11, v7
    v_xor_b32 v6, 64, v5
    v_add_u32 v6, 0x4000, v6
    s_lshl_b32 s32, s30, 19
    s_lshl_b32 s33, s28, 17
    s_add_u32 s32, s32, s33
    s_add_u32 s36, s32, 2048
    s_lshl_b32 s33, s31, 17
    s_lshl_b32 s34, s28, 15
    s_add_u32 s33, s33, s34
    s_lshl_b32 s34, s28, 12
    s_lshl_b32 s38, s28, 11
    s_mov_b32 s44, s32
    s_mov_b32 s45, s33
    s_lshr_b32 s46, s2, 3
    s_and_b32 s46, s46, 15
    s_lshl_b32 s46, s46, 7
    s_waitcnt lgkmcnt(0)
    """)
    srd(a, 4, L * 2048 * 2)
    srd(a, 8, D * P * 2)
    srd(a, 12, D * P * 2)
    for b in range(2):
        k2_dma_stage(a, b)
    a("s_mov_b32 s35, 4")
    a.label("K2_PLOOP")
    for b in range(3):
        a("s_waitcnt vmcnt(12)")
        a("s_barrier")
        k2_dma_stage(a, (b + 2) % 3)
    a("""
    s_sub_u32 s35, s35, 1
    s_cmp_lg_u32 s35, 0
    s_cbranch_scc1 K2_PLOOP
    """)
    for b in range(2):
        a("s_waitcnt vmcnt(12)")
        a("s_barrier")
        k2_dma_stage(a, (b + 2) % 3)
    a("""
    s_waitcnt vmcnt(12)
    s_barrier
    s_waitcnt vmcnt(0)
    s_barrier
    s_endpgm
    """)
    a.label("K2_MAIN")
    a("""
    s_and_b32 s26, s28, 1              ; wm
    s_lshr_b32 s27, s28, 1             ; kh
    v_and_b32 v14, 31, v0
    v_lshrrev_b32 v15, 5, v0
    """)
    if K2M16:
        a("""
        v_and_b32 v14, 15, v0
        v_lshrrev_b32 v15, 4, v0
        """)
    a("""
    v_lshrrev_b32 v7, 1, v14
    v_and_b32 v7, 7, v7
    v_xor_b32 v7, v15, v7
    v_lshlrev_b32 v7, 4, v7
    s_lshl_b32 s29, s27, 14
    s_lshl_b32 s32, s26, 13
    s_add_u32 s29, s29, s32
    v_lshlrev_b32 v8, 7, v14
    v_add3_u32 v144, v8, v7, s29
    s_lshl_b32 s29, s27, 13
    s_add_u32 s29, s29, 32768
    v_add3_u32 v148, v8, v7, s29
    """)
    for ks in range(1, 4):
        kx = 64 * ks if K2M16 else 32 * ks
        a(f"v_xor_b32 v{144+ks}, {kx & 127}, v144")
        a(f"v_xor_b32 v{148+ks}, {kx & 127}, v148")
    for b in range(1, 3):
        for i in range(8):
            a(f"v_add_u32 v{144+8*b+i}, {b*K2_STAGE}, v{144+i}")
    a("s_waitcnt lgkmcnt(0)")
    srd(a, 16, L * D * 2)
    srd(a, 20, L * D * 4)
    stamp(a, 0, 4, 1)
    a("""
    v_lshrrev_b32 v16, 4, v0
    v_and_b32 v17, 15, v0
    v_lshlrev_b32 v18, 11, v16
    v_lshl_add_u32 v18, v17, 3, v18
    s_lshl_b32 s29, s30, 18
    s_lshl_b32 s37, s28, 16
    s_add_u32 s29, s29, s37
    s_lshl_b32 s37, s31, 7
    s_add_u32 s29, s29, s37
    v_lshlrev_b32 v19, 3, v17
    v_add_u32 v19, s37, v19
    global_load_dwordx2 v[20:21], v19, s[24:25]
    """)
    for i in range(8):
        a(f"buffer_load_dwordx2 v[{128+2*i}:{129+2*i}], v18, s[16:19], s29 offen")
        if i < 7:
            a("s_add_u32 s29, s29, 8192")
    for r in range(64, 128):
        a(f"v_mov_b32 v{r}, 0")

    sets = [(32, 36, 40, 44), (48, 52, 56, 60)]
    ACC = [[64, 80], [96, 112]]

    def stage16(b):
        a("s_barrier")
        FS = [32, 168]

        def rd(ks, f):
            va = 144 + 8 * b + ks
            vb = 148 + 8 * b + ks
            for i in range(4):
                a(f"ds_read_b128 v[{f+4*i}:{f+4*i+3}], v{va} offset:{2048*i}")
                a(f"ds_read_b128 v[{f+16+4*i}:{f+16+4*i+3}], v{vb} offset:{2048*i}")

        def mf(f):
            for i in range(4):
                for j in range(4):
                    acc = 64 + 16 * i + 4 * j
                    a(f"v_mfma_f32_16x16x32_bf16 v[{acc}:{acc+3}], v[{f+4*i}:{f+4*i+3}], v[{f+16+4*j}:{f+16+4*j+3}], v[{acc}:{acc+3}]")
        rd(0, FS[0])
        rd(1, FS[1])
        a("s_waitcnt lgkmcnt(8)")
        mf(FS[0])
        a("s_waitcnt lgkmcnt(0)")
        mf(FS[1])

    def stage(b):
        if K2M16:
            return stage16(b)
        a("s_barrier")

        def rd(ks, s):
            if NOCOMP > 1:
                return
            A0, A1, B0, B1 = s
            va = 144 + 8 * b + ks
            vb = 148 + 8 * b + ks
            a(f"ds_read_b128 v[{A0}:{A0+3}], v{va}")
            a(f"ds_read_b128 v[{B0}:{B0+3}], v{vb}")
            a(f"ds_read_b128 v[{B1}:{B1+3}], v{vb} offset:4096")
            a(f"ds_read_b128 v[{A1}:{A1+3}], v{va} offset:4096")

        def mf(s):
            A0, A1, B0, B1 = s
            mfma(a, ACC[0][0], A0, B0)
            mfma(a, ACC[0][1], A0, B1)
            mfma(a, ACC[1][0], A1, B0)
            mfma(a, ACC[1][1], A1, B1)
        compute_stage(a, rd, mf, sets)

    stamp(a, 1, 4, 1)
    a("s_mov_b32 s35, 5")
    a.label("K2_LOOP")
    for b in range(3):
        stage(b)
    a("""
    s_sub_u32 s35, s35, 1
    s_cmp_lg_u32 s35, 0
    s_cbranch_scc1 K2_LOOP
    """)
    stage(0)
    a("s_nop 15")
    a("s_nop 3")
    stamp(a, 2, 4, 1)
    a("""
    s_barrier
    s_lshl_b32 s29, s27, 15
    s_lshl_b32 s37, s26, 14
    s_add_u32 s29, s29, s37
    v_lshlrev_b32 v1, 10, v15
    v_lshl_add_u32 v1, v14, 2, v1
    v_add_u32 v1, s29, v1
    """)
    if K2M16:
        for i in range(4):
            for j in range(4):
                for r in range(4):
                    a(f"ds_write_b32 v1, v{64+16*i+4*j+r} offset:{(16*i + r)*256 + j*64}")
    else:
      for rb in range(2):
        for nb in range(2):
            for r in range(16):
                off = (32 * rb + (r & 3) + 8 * (r >> 2)) * 256 + nb * 128
                a(f"ds_write_b32 v1, v{ACC[rb][nb]+r} offset:{off}")
    a("""
    s_lshl_b32 s29, s28, 13
    v_lshlrev_b32 v2, 8, v16
    v_lshl_add_u32 v2, v17, 4, v2
    v_add_u32 v2, s29, v2
    v_lshlrev_b32 v3, 12, v16
    v_lshl_add_u32 v3, v17, 4, v3
    s_lshl_b32 s29, s30, 19
    s_lshl_b32 s37, s28, 17
    s_add_u32 s29, s29, s37
    s_lshl_b32 s37, s31, 8
    s_add_u32 s29, s29, s37
    s_waitcnt vmcnt(0)
    v_lshlrev_b32 v22, 16, v20
    v_and_b32 v23, 0xffff0000, v20
    v_lshlrev_b32 v24, 16, v21
    v_and_b32 v25, 0xffff0000, v21
    """)
    for i in range(8):
        xr = 128 + 2 * i
        S = 32 + 4 * i
        a(f"""
        v_lshlrev_b32 v{S}, 16, v{xr}
        v_and_b32 v{S+1}, 0xffff0000, v{xr}
        v_lshlrev_b32 v{S+2}, 16, v{xr+1}
        v_and_b32 v{S+3}, 0xffff0000, v{xr+1}
        v_mul_f32 v{S}, v{S}, v22
        v_mul_f32 v{S+1}, v{S+1}, v23
        v_mul_f32 v{S+2}, v{S+2}, v24
        v_mul_f32 v{S+3}, v{S+3}, v25
        v_cvt_pk_bf16_f32 v{S}, v{S}, v{S+1}
        v_cvt_pk_bf16_f32 v{S+2}, v{S+2}, v{S+3}
        v_and_b32 v{S+1}, 0xffff0000, v{S}
        v_lshlrev_b32 v{S}, 16, v{S}
        v_and_b32 v{S+3}, 0xffff0000, v{S+2}
        v_lshlrev_b32 v{S+2}, 16, v{S+2}
        """)
    a("""
    s_waitcnt lgkmcnt(0)
    s_barrier
    """)
    for i in range(8):
        a(f"ds_read_b128 v[{64+8*i}:{67+8*i}], v2 offset:{i*1024}")
        a(f"ds_read_b128 v[{68+8*i}:{71+8*i}], v2 offset:{32768 + i*1024}")
    for i in range(8):
        A = 64 + 8 * i
        S = 32 + 4 * i
        a(f"""
        s_waitcnt lgkmcnt({14-2*i})
        v_pk_add_f32 v[{A}:{A+1}], v[{A}:{A+1}], v[{A+4}:{A+5}]
        v_pk_add_f32 v[{A+2}:{A+3}], v[{A+2}:{A+3}], v[{A+6}:{A+7}]
        v_pk_add_f32 v[{A}:{A+1}], v[{A}:{A+1}], v[{S}:{S+1}]
        v_pk_add_f32 v[{A+2}:{A+3}], v[{A+2}:{A+3}], v[{S+2}:{S+3}]
        buffer_store_dwordx4 v[{A}:{A+3}], v3, s[20:23], s29 offen {OSC}
        s_add_u32 s29, s29, 16384
        """)
    if STAMP:
        a("s_waitcnt vmcnt(0)")
    stamp(a, 3, 4, 1)
    a.label("K2_END")
    a("s_endpgm")


HEADER = """; S5 SSM (GEMM -> diagonal complex scan -> GEMM), generated by work/gen4.py (hand-designed schedule)
; @launch kernel=ssm_k1_kernel grid=(256,1,1) block=(512,1,1) lds={k1lds}
; @launch kernel=ssm_k2_kernel grid=(256,1,1) block=(512,1,1) lds={k2lds}
.amdgcn_target "amdgcn-amd-amdhsa--gfx950"
.text
"""

KD = """
.amdhsa_kernel {name}
  .amdhsa_next_free_vgpr {vgpr}
  .amdhsa_next_free_sgpr 64
  .amdhsa_accum_offset {vgpr}
  .amdhsa_group_segment_fixed_size 0
  .amdhsa_kernarg_size 96
  .amdhsa_user_sgpr_count 2
  .amdhsa_user_sgpr_kernarg_segment_ptr 1
  .amdhsa_system_sgpr_workgroup_id_x 1
  .amdhsa_float_denorm_mode_32 3
  .amdhsa_float_denorm_mode_16_64 3
.end_amdhsa_kernel
"""


def main():
    out = HEADER.format(k1lds=K1_LDS, k2lds=K2_LDS)
    a = Asm()
    a.lines.append(".globl ssm_k1_kernel\n.p2align 8\n.type ssm_k1_kernel,@function")
    gen_k1(a)
    a.lines.append(".globl ssm_k2_kernel\n.p2align 8\n.type ssm_k2_kernel,@function")
    gen_k2(a)
    out += a.text()
    out += '.section .rodata,"a"\n.p2align 6\n'
    out += KD.format(name="ssm_k1_kernel", vgpr=256)
    out += ".p2align 6\n"
    out += KD.format(name="ssm_k2_kernel", vgpr=256 if STAMP else (200 if K2M16 else 168))
    path = sys.argv[1] if len(sys.argv) > 1 else "standalone__ssm_conv_s5__prompt.s"
    open(path, "w").write(out)
    print("wrote", path, len(out))


if __name__ == "__main__":
    main()
```

```python
import sys, os


def env(name, default=0):
    return int(os.environ.get(name, str(default)))


NOCOMP, NODMA, STAMP = env("NOCOMP"), env("NODMA"), env("STAMP")
PF1, PFC = env("PF1", 0), env("PFC", 1)
HSC, OSC = os.environ.get("HSC", "sc1"), os.environ.get("OSC", "sc1")
K2M16 = env("K2M16", 1)
ROT1, ROT2 = env("ROT1", 1), env("ROT2", 0)
PRIO = env("PRIO", 0)

L, D, P = 2048, 1024, 1024
WS_AGG = 8 << 20
WS_STAMP = 16 << 20


class Asm:
    def __init__(self):
        self.lines = []

    def __call__(self, s=""):
        for ln in s.strip("\n").split("\n"):
            t = ln.strip()
            self.lines.append(("    " + t) if t else "")

    def label(self, s):
        self.lines.append(s + ":")

    def text(self):
        return "\n".join(self.lines) + "\n"


def stamp(a, idx, wsreg, kern):
    if not STAMP:
        return
    for nm, off, ins in (("ST", idx, "s_memrealtime"), ("SU", 8 + idx, "s_memtime")):
        a(f"""
        {ins} s[44:45]
        s_lshl_b32 s46, s2, 7
        s_add_u32 s46, s46, {WS_STAMP + off*8 + kern*65536}
        s_waitcnt lgkmcnt(0)
        v_mov_b32 v254, s44
        v_mov_b32 v255, s45
        v_mov_b32 v253, s46
        s_cmp_lg_u32 s28, 0
        s_cbranch_scc1 {nm}_{kern}_{idx}
        v_cmp_eq_u32 vcc, 0, v0
        s_and_saveexec_b64 s[46:47], vcc
        global_store_dwordx2 v253, v[254:255], s[{wsreg}:{wsreg+1}]
        s_mov_b64 exec, s[46:47]
        """)
        a.label(f"{nm}_{kern}_{idx}")


def srd(a, d, nbytes):
    a(f"s_and_b32 s{d+1}, s{d+1}, 0xffff")
    a(f"s_mov_b32 s{d+2}, {nbytes}")
    a(f"s_mov_b32 s{d+3}, 0x00020000")


def mfma(a, acc, A, B):
    if NOCOMP:
        return
    a(f"v_mfma_f32_32x32x16_bf16 v[{acc}:{acc+15}], v[{A}:{A+3}], v[{B}:{B+3}], v[{acc}:{acc+15}]")


LOG2E_HI, LOG2E_LO, LN2 = 0x3fb8aa3b, 0x32a57060, 0x3f317218


def exp_f32(a, dst, src, t0, t1, sA, sB):
    a(f"""
    s_mov_b32 s{sA}, {LOG2E_HI:#x}
    s_mov_b32 s{sB}, {LOG2E_LO:#x}
    v_mul_f32 v{t0}, s{sA}, v{src}
    v_fma_f32 v{t1}, v{src}, s{sA}, -v{t0}
    v_fma_f32 v{t1}, v{src}, s{sB}, v{t1}
    v_exp_f32 v{t0}, v{t0}
    s_mov_b32 s{sA}, {LN2:#x}
    v_mul_f32 v{t1}, s{sA}, v{t1}
    s_nop 0
    v_fma_f32 v{dst}, v{t0}, v{t1}, v{t0}
    """)


def csq(a, dr, di, sr, si, t):
    a(f"""
    v_mul_f32 v{t}, v{si}, v{si}
    v_fma_f32 v{dr}, v{sr}, v{sr}, -v{t}
    v_add_f32 v{t}, v{sr}, v{sr}
    v_mul_f32 v{di}, v{t}, v{si}
    """)


def cfma(a, dr, di, ar, ai, br, bi, cr, ci):
    a(f"""
    v_fma_f32 v{dr}, v{ar}, v{br}, v{cr}
    v_fma_f32 v{di}, v{ar}, v{bi}, v{ci}
    v_fma_f32 v{dr}, -v{ai}, v{bi}, v{dr}
    v_fma_f32 v{di}, v{ai}, v{br}, v{di}
    """)


WG_DECODE = """
    s_and_b32 s26, s2, 7
    s_lshr_b32 s27, s2, 3
    s_and_b32 s30, s26, 3
    s_lshl_b32 s30, s30, 2
    s_and_b32 s31, s27, 3
    s_add_u32 s30, s30, s31            ; s30 = chunk
    s_lshr_b32 s31, s26, 2
    s_lshl_b32 s31, s31, 3
    s_lshr_b32 s27, s27, 2
    s_add_u32 s31, s31, s27
    v_lshrrev_b32 v1, 6, v0
    v_and_b32 v0, 63, v0               ; v0 = lane
    v_readfirstlane_b32 s28, v1        ; s28 = wave
    s_nop 3
"""


def compute_stage(a, rd, mf, sets):
    rd(0, sets[0])
    for ks in range(4):
        if ks < 3:
            rd(ks + 1, sets[(ks + 1) & 1])
            a("s_waitcnt lgkmcnt(4)")
        else:
            a("s_waitcnt lgkmcnt(0)")
        mf(sets[ks & 1])


def dma(a, m0base, m0off, voff, srdr, soff):
    a(f"s_add_u32 m0, s{m0base}, {m0off}")
    a("s_nop 0")
    a(f"buffer_load_dwordx4 v{voff}, s[{srdr}:{srdr+3}], s{soff} offen lds")


K1_STAGE, K1_NB = 32768, 4
K1_AGG = K1_STAGE * K1_NB
K1_LDS = K1_AGG + 2048
K1_PB = 272


def k1_dma_stage(a, b):
    if NODMA:
        return
    base = b * K1_STAGE
    if ROT1:
        a("s_add_u32 s32, s44, s46")
        a("s_add_u32 s33, s45, s46")
    for j in range(4):
        dma(a, 34, base + j * 1024, 1 + j, 4, 32)
    for j in range(2):
        dma(a, 38, base + 16384 + j * 1024, 1 + j, 8, 33)
    for j in range(2):
        dma(a, 38, base + 24576 + j * 1024, 1 + j, 12, 33)
    if ROT1:
        a("s_add_u32 s46, s46, 128")
        a("s_and_b32 s46, s46, 2047")
    else:
        a("s_add_u32 s32, s32, 128")
        a("s_add_u32 s33, s33, 128")


def gen_k1(a):
    a.label("ssm_k1_kernel")
    a("""
    s_cmp_ge_u32 s2, 256
    s_cbranch_scc1 K1_END
    s_load_dwordx2 s[4:5], s[0:1], 0
    s_load_dwordx2 s[8:9], s[0:1], 24
    s_load_dwordx2 s[12:13], s[0:1], 32
    s_load_dwordx2 s[16:17], s[0:1], 88
    s_load_dwordx2 s[18:19], s[0:1], 80
    s_load_dwordx2 s[20:21], s[0:1], 8
    s_load_dwordx2 s[22:23], s[0:1], 16
    s_load_dwordx2 s[24:25], s[0:1], 56
    s_load_dwordx2 s[40:41], s[0:1], 40
    s_load_dwordx2 s[42:43], s[0:1], 48
    """)
    a(WG_DECODE)
    a("""
    s_cmp_lt_u32 s28, 4
    s_cbranch_scc1 K1_MAIN
    PRIO_P
    s_sub_u32 s28, s28, 4
    v_lshrrev_b32 v1, 3, v0
    v_lshlrev_b32 v1, 11, v1
    v_lshrrev_b32 v2, 4, v0
    v_xor_b32 v2, v2, v0
    v_and_b32 v2, 7, v2
    v_lshlrev_b32 v2, 4, v2
    v_add_u32 v1, v1, v2
    v_xor_b32 v2, 64, v1
    v_add_u32 v2, 0x4000, v2
    v_add_u32 v3, 0x8000, v1
    v_add_u32 v4, 0x8000, v2
    s_lshl_b32 s32, s30, 18
    s_lshl_b32 s33, s28, 16
    s_add_u32 s32, s32, s33
    s_lshl_b32 s33, s31, 17
    s_lshl_b32 s34, s28, 15
    s_add_u32 s33, s33, s34
    s_lshl_b32 s34, s28, 12
    s_lshl_b32 s38, s28, 11
    s_mov_b32 s44, s32
    s_mov_b32 s45, s33
    s_lshr_b32 s46, s2, 3
    s_and_b32 s46, s46, 15
    s_lshl_b32 s46, s46, 7
    s_waitcnt lgkmcnt(0)
    """)
    srd(a, 4, L * D * 2)
    srd(a, 8, P * D * 2)
    srd(a, 12, P * D * 2)
    for b in range(3):
        k1_dma_stage(a, b)
    a("s_mov_b32 s35, 3")
    a.label("K1_PLOOP")
    for b in range(4):
        a("s_waitcnt vmcnt(16)")
        a("s_barrier")
        k1_dma_stage(a, (b + 3) % 4)
    a("""
    s_sub_u32 s35, s35, 1
    s_cmp_lg_u32 s35, 0
    s_cbranch_scc1 K1_PLOOP
    s_waitcnt vmcnt(16)
    s_barrier
    """)
    k1_dma_stage(a, 3)
    a("""
    s_waitcnt vmcnt(16)
    s_barrier
    s_waitcnt vmcnt(8)
    s_barrier
    s_waitcnt vmcnt(0)
    s_barrier
    s_endpgm
    """)

    a.label("K1_MAIN")
    a("""
    s_lshr_b32 s26, s28, 1             ; wr
    s_and_b32 s27, s28, 1              ; wc
    v_and_b32 v7, 31, v0               ; n / m
    v_lshrrev_b32 v8, 5, v0            ; hb
    s_lshl_b32 s29, s31, 6
    s_lshl_b32 s32, s27, 5
    s_add_u32 s29, s29, s32
    v_add_u32 v9, s29, v7
    v_lshlrev_b32 v9, 1, v9
    v_mov_b32 v244, 0
    s_waitcnt lgkmcnt(0)
    s_mov_b32 s48, s4
    s_mov_b32 s49, s5
    """)
    stamp(a, 0, 16, 0)
    a(f"""
    global_load_ushort v10, v9, s[20:21]
    global_load_ushort v11, v9, s[22:23]
    global_load_ushort v12, v9, s[24:25]
    s_cmp_lg_u32 s28, 0
    s_cbranch_scc1 K1_NOCLR
    s_lshl_b32 s29, s31, 14
    s_lshl_b32 s32, s30, 10
    s_add_u32 s29, s29, s32
    s_add_u32 s29, s29, {WS_AGG}
    v_lshlrev_b32 v1, 4, v0
    v_add_u32 v1, s29, v1
    v_mov_b32 v32, 0
    v_mov_b32 v33, 0
    v_mov_b32 v34, 0
    v_mov_b32 v35, 0
    s_lshl_b32 s29, s31, 2
    v_mov_b32 v2, s29
    v_mov_b32 v3, 1
    global_store_dwordx4 v1, v[32:35], s[16:17] sc1
    s_waitcnt vmcnt(1)
    """)
    a("s_branch K1_CLRD")
    a.label("K1_NOCLR")
    if PF1 == 3:
        a("""
        v_lshlrev_b32 v1, 7, v0
        s_cmp_eq_u32 s28, 1
        s_cbranch_scc0 K1_PF3B
        s_lshl_b32 s29, s2, 14
        v_add_u32 v1, s29, v1
        v_add_u32 v2, 0x2000, v1
        global_load_dword v240, v1, s[4:5]
        global_load_dword v241, v2, s[4:5]
        s_waitcnt vmcnt(2)
        s_branch K1_CLRD
        """)
        a.label("K1_PF3B")
        a("""
        s_lshl_b32 s29, s2, 13
        v_add_u32 v1, s29, v1
        s_cmp_eq_u32 s28, 2
        s_cbranch_scc0 K1_PF3C
        global_load_dword v240, v1, s[8:9]
        s_waitcnt vmcnt(1)
        s_branch K1_CLRD
        """)
        a.label("K1_PF3C")
        a("""
        global_load_dword v240, v1, s[12:13]
        s_waitcnt vmcnt(1)
        """)
    elif PF1:
        a("""
        s_lshr_b32 s29, s2, 3
        s_lshl_b32 s29, s29, 4             ; 16*j
        s_and_b32 s32, s2, 3
        s_bfe_u32 s33, s2, 0x10002
        s_cmp_eq_u32 s28, 1
        s_cselect_b32 s32, s32, s33
        s_lshl_b32 s32, s32, 9
        s_add_u32 s29, s29, s32
        v_and_b32 v1, 15, v0
        v_add_u32 v1, s29, v1
        v_lshlrev_b32 v1, 11, v1
        v_lshrrev_b32 v2, 4, v0
        v_lshl_add_u32 v1, v2, 7, v1
        s_cmp_eq_u32 s28, 2
        s_cbranch_scc1 K1_PFB
        s_cmp_eq_u32 s28, 3
        s_cbranch_scc1 K1_PFBI
        """)
        blocks = range(4) if PF1 == 1 else [1]
        a("s_mov_b32 s48, s4")
        a("s_mov_b32 s49, s5")
        a("s_branch K1_PFD")
        a.label("K1_PFB")
        a("s_mov_b32 s48, s8")
        a("s_mov_b32 s49, s9")
        a("s_branch K1_PFD")
        a.label("K1_PFBI")
        a("s_mov_b32 s48, s12")
        a("s_mov_b32 s49, s13")
        a.label("K1_PFD")
        for i in blocks:
            a(f"global_load_dword v{240+i}, v1, s[48:49] offset:{i*512}")
        a("v_add_u32 v244, 1024, v1")
        a(f"s_waitcnt vmcnt({len(blocks)})")
    else:
        a("s_waitcnt vmcnt(0)")
    a.label("K1_CLRD")
    a("""
    v_lshrrev_b32 v1, 2, v7
    v_and_b32 v1, 1, v1
    v_lshlrev_b32 v1, 5, v1
    v_and_b32 v2, 3, v7
    v_add_u32 v1, v1, v2
    v_lshrrev_b32 v2, 3, v7
    v_lshlrev_b32 v2, 2, v2
    v_add_u32 v1, v1, v2
    s_lshl_b32 s29, s26, 6
    v_add_u32 v1, s29, v1
    v_lshrrev_b32 v2, 1, v1
    v_and_b32 v2, 7, v2
    v_xor_b32 v2, v8, v2
    v_lshlrev_b32 v2, 4, v2
    v_lshl_add_u32 v192, v1, 7, v2
    s_lshl_b32 s29, s27, 5
    v_add_u32 v1, s29, v7
    v_lshrrev_b32 v2, 1, v1
    v_and_b32 v2, 7, v2
    v_xor_b32 v2, v8, v2
    v_lshlrev_b32 v2, 4, v2
    v_lshl_add_u32 v196, v1, 7, v2
    v_add_u32 v196, 0x4000, v196
    """)
    for ks in range(1, 4):
        a(f"v_xor_b32 v{192+ks}, {32*ks}, v192")
        a(f"v_xor_b32 v{196+ks}, {32*ks}, v196")
    for i in range(8):
        a(f"v_add_u32 v{200+i}, 0x10000, v{192+i}")
    for r in range(64, 128):
        a(f"v_mov_b32 v{r}, 0")
    a("""
    v_lshlrev_b32 v10, 16, v10
    v_lshlrev_b32 v11, 16, v11
    v_lshlrev_b32 v12, 16, v12
    """)
    exp_f32(a, 13, 12, 14, 15, 36, 37)
    a("""
    v_cvt_pk_bf16_f32 v13, v13, v13
    v_lshlrev_b32 v13, 16, v13
    v_mul_f32 v14, v13, v10
    v_mul_f32 v15, v13, v11
    """)
    exp_f32(a, 16, 14, 17, 18, 36, 37)
    a("""
    v_mul_f32 v17, 0.15915494, v15
    v_fract_f32 v17, v17
    v_sin_f32 v18, v17
    v_cos_f32 v19, v17
    s_nop 0
    v_mul_f32 v20, v16, v19            ; Lr
    v_mul_f32 v21, v16, v18            ; Li
    v_sub_f32 v22, 0, v21              ; -Li
    v_add_f32 v13, -1.0, v20
    v_mul_f32 v14, v13, v10
    v_fma_f32 v14, v21, v11, v14
    v_mul_f32 v15, v21, v10
    v_fma_f32 v15, -v13, v11, v15
    v_mul_f32 v16, v10, v10
    v_fma_f32 v16, v11, v11, v16
    v_rcp_f32 v17, v16
    s_nop 0
    v_fma_f32 v18, -v16, v17, 1.0
    v_fma_f32 v17, v17, v18, v17
    v_mul_f32 v23, v14, v17            ; cr
    v_mul_f32 v24, v15, v17            ; ci
    v_mul_f32 v25, v23, v20
    v_fma_f32 v25, -v24, v21, v25
    v_mul_f32 v26, v23, v21
    v_fma_f32 v26, v24, v20, v26       ; q (im)
    v_add_f32 v208, v23, v23           ; (2cr,2cr)
    v_add_f32 v209, v23, v23
    v_mul_f32 v210, -2.0, v24          ; (-2ci,-2ci)
    v_mul_f32 v211, -2.0, v24
    v_mul_f32 v212, -2.0, v23          ; (-2cr,-2cr)
    v_mul_f32 v213, -2.0, v23
    """)
    csq(a, 13, 14, 20, 21, 17)
    a("""
    v_mov_b32 v214, v13                ; (L2r,L2r)
    v_mov_b32 v215, v13
    v_mov_b32 v216, v14                ; (L2i,L2i)
    v_mov_b32 v217, v14
    v_sub_f32 v218, 0, v14             ; (-L2i,-L2i)
    v_sub_f32 v219, 0, v14
    """)
    csq(a, 15, 16, 13, 14, 17)
    csq(a, 13, 14, 15, 16, 17)
    csq(a, 15, 16, 13, 14, 17)
    csq(a, 27, 28, 15, 16, 17)
    csq(a, 13, 14, 27, 28, 17)
    csq(a, 29, 30, 13, 14, 17)

    ACC = [[64, 80], [96, 112]]
    sets = [(32, 36, 40, 44), (48, 52, 56, 60)]

    def stage(b):
        a("s_barrier")

        def rd(ks, s):
            if NOCOMP > 1:
                return
            A0, A1, B0, B1 = s
            va = (192 if b < 2 else 200) + ks
            vb = (196 if b < 2 else 204) + ks
            base = (b & 1) * K1_STAGE
            a(f"ds_read_b128 v[{A0}:{A0+3}], v{va} offset:{base}")
            a(f"ds_read_b128 v[{B0}:{B0+3}], v{vb} offset:{base}")
            a(f"ds_read_b128 v[{B1}:{B1+3}], v{vb} offset:{base + 8192}")
            a(f"ds_read_b128 v[{A1}:{A1+3}], v{va} offset:{base + 2048}")

        def mf(s):
            A0, A1, B0, B1 = s
            mfma(a, ACC[0][0], A0, B0)
            mfma(a, ACC[0][1], A0, B1)
            mfma(a, ACC[1][0], A1, B0)
            mfma(a, ACC[1][1], A1, B1)
        compute_stage(a, rd, mf, sets)

    stamp(a, 1, 16, 0)
    a("s_mov_b32 s35, 4")
    a.label("K1_LOOP")
    a("""
    s_cmp_lg_u32 s28, 0
    s_cbranch_scc1 K1_NOSIG
    s_cmp_lg_u32 s35, 3
    s_cbranch_scc1 K1_NOSIG
    s_lshl_b32 s29, s31, 2
    v_mov_b32 v247, s29
    v_mov_b32 v248, 1
    s_waitcnt vmcnt(0)
    v_cmp_eq_u32 vcc, 0, v0
    s_and_saveexec_b64 s[36:37], vcc
    global_atomic_add v247, v248, s[18:19]
    s_mov_b64 exec, s[36:37]
    """)
    if PFC:
        a("""
        s_lshl_b32 s29, s2, 13
        v_lshlrev_b32 v1, 7, v0
        v_add_u32 v1, s29, v1
        global_load_dword v245, v1, s[40:41]
        global_load_dword v246, v1, s[42:43]
        """)
    a.label("K1_NOSIG")
    if PF1 == 2:
        a("""
        s_cmp_eq_u32 s28, 0
        s_cbranch_scc1 K1_LPF
        s_cmp_lt_u32 s35, 3
        s_cbranch_scc1 K1_LPF
        global_load_dword v240, v244, s[48:49]
        v_add_u32 v244, 512, v244
        """)
        a.label("K1_LPF")
    for b in range(4):
        stage(b)
    a("""
    s_sub_u32 s35, s35, 1
    s_cmp_lg_u32 s35, 0
    s_cbranch_scc1 K1_LOOP
    s_nop 15
    s_nop 3
    """)
    stamp(a, 2, 16, 0)

    def gr(t):
        return ACC[t // 16][0] + (t % 16)

    def gi(t):
        return ACC[t // 16][1] + (t % 16)

    a("""
    s_lshl_b32 s29, s31, 2
    v_mov_b32 v34, s29
    global_load_dword v35, v34, s[18:19] sc1
    """)
    for t in range(1, 32):
        a(f"v_fmac_f32 v{gr(t)}, v20, v{gr(t-1)}")
        a(f"v_fmac_f32 v{gi(t)}, v20, v{gi(t-1)}")
        a(f"v_fmac_f32 v{gr(t)}, v22, v{gi(t-1)}")
        a(f"v_fmac_f32 v{gi(t)}, v21, v{gr(t-1)}")
    a(f"""
    s_lshl_b32 s29, s27, 5
    v_add_u32 v9, s29, v7
    v_lshlrev_b32 v10, 3, v9
    v_add_u32 v10, {K1_AGG}, v10
    s_lshl_b32 s29, s26, 1
    v_add_u32 v11, s29, v8
    v_lshlrev_b32 v11, 9, v11
    v_add_u32 v11, v11, v10
    ds_write2_b32 v11, v{gr(31)}, v{gi(31)} offset0:0 offset1:1
    s_mov_b32 s35, 0x40000
    """)
    a.label("K1_POLL")
    a("""
    s_waitcnt vmcnt(0)
    v_readfirstlane_b32 s29, v35
    s_nop 3
    s_cmp_ge_u32 s29, 16
    s_cbranch_scc1 K1_POLL_DONE
    s_sub_u32 s35, s35, 1
    s_cmp_eq_u32 s35, 0
    s_cbranch_scc1 K1_POLL_DONE
    s_sleep 2
    global_load_dword v35, v34, s[18:19] sc1
    s_branch K1_POLL
    """)
    a.label("K1_POLL_DONE")
    stamp(a, 3, 16, 0)
    a(f"""
    s_waitcnt lgkmcnt(0)
    s_barrier
    ds_read_b64 v[12:13], v10
    ds_read_b64 v[14:15], v10 offset:512
    ds_read_b64 v[16:17], v10 offset:1024
    ds_read_b64 v[18:19], v10 offset:1536
    s_lshl_b32 s29, s31, 14
    s_add_u32 s29, s29, {WS_AGG}
    v_lshlrev_b32 v9, 4, v9
    v_add_u32 v9, s29, v9
    s_lshl_b32 s29, s30, 10
    v_add_u32 v11, s29, v9
    s_waitcnt lgkmcnt(0)
    """)
    cfma(a, 36, 37, 12, 13, 27, 28, 14, 15)
    cfma(a, 38, 39, 36, 37, 27, 28, 16, 17)
    cfma(a, 32, 34, 38, 39, 27, 28, 18, 19)
    a("""
    v_mov_b32 v33, -1
    v_mov_b32 v35, -1
    s_cmp_lg_u32 s26, 0
    s_cbranch_scc1 K1_NOPUB
    v_cmp_gt_u32 vcc, 32, v0
    s_and_saveexec_b64 s[36:37], vcc
    global_store_dwordx4 v11, v[32:35], s[16:17] sc1
    s_mov_b64 exec, s[36:37]
    """)
    a.label("K1_NOPUB")
    X, PI = 128, 160

    def xr(t):
        return X + t

    def pi_(t):
        return PI + t
    for t in range(0, 32, 2):
        a(f"v_pk_mul_f32 v[{xr(t)}:{xr(t)+1}], v[{gr(t)}:{gr(t)+1}], v[208:209]")
        a(f"v_pk_fma_f32 v[{xr(t)}:{xr(t)+1}], v[{gi(t)}:{gi(t)+1}], v[210:211], v[{xr(t)}:{xr(t)+1}]")
        a(f"v_pk_mul_f32 v[{gi(t)}:{gi(t)+1}], v[{gi(t)}:{gi(t)+1}], v[212:213]")
        a(f"v_pk_fma_f32 v[{gi(t)}:{gi(t)+1}], v[{gr(t)}:{gr(t)+1}], v[210:211], v[{gi(t)}:{gi(t)+1}]")
    a(f"""
    v_mov_b32 v{gr(0)}, 1.0
    v_mov_b32 v{gr(1)}, v20
    v_mov_b32 v{pi_(0)}, 0
    v_mov_b32 v{pi_(1)}, v22
    """)
    for t in range(2, 32, 2):
        pr0, pi0, pr1, pi1 = gr(t - 2), pi_(t - 2), gr(t), pi_(t)
        a(f"v_pk_mul_f32 v[{pr1}:{pr1+1}], v[{pr0}:{pr0+1}], v[214:215]")
        a(f"v_pk_mul_f32 v[{pi1}:{pi1+1}], v[{pi0}:{pi0+1}], v[214:215]")
        a(f"v_pk_fma_f32 v[{pr1}:{pr1+1}], v[{pi0}:{pi0+1}], v[216:217], v[{pr1}:{pr1+1}]")
        a(f"v_pk_fma_f32 v[{pi1}:{pi1+1}], v[{pr0}:{pr0+1}], v[218:219], v[{pi1}:{pi1+1}]")
    a("""
    v_mov_b32 v36, 0
    v_mov_b32 v37, 0
    s_cmp_eq_u32 s30, 0
    s_cbranch_scc1 K1_CARRY_DONE
    v_add_u32 v40, 0x1000, v9
    v_add_u32 v41, 0x2000, v9
    v_add_u32 v42, 0x3000, v9
    s_mov_b32 s35, 0x40000
    """)
    EB = 192
    a.label("K1_GPOLL")
    for cc in range(15):
        if cc > 0:
            a(f"s_cmp_le_u32 s30, {cc}")
            a("s_cbranch_scc1 K1_GP_ISSUED")
        vb = [9, 40, 41, 42][cc // 4]
        a(f"global_load_dwordx4 v[{EB+4*cc}:{EB+4*cc+3}], v{vb}, s[16:17] offset:{(cc%4)*1024} sc1")
    a.label("K1_GP_ISSUED")
    a("s_waitcnt vmcnt(0)")
    a("v_mov_b32 v38, -1")
    for cc in range(15):
        if cc > 0:
            a(f"s_cmp_le_u32 s30, {cc}")
            a("s_cbranch_scc1 K1_GP_CHECKED")
        a(f"v_and_b32 v38, v38, v{EB+4*cc+1}")
        a(f"v_and_b32 v38, v38, v{EB+4*cc+3}")
    a.label("K1_GP_CHECKED")
    a("""
    v_cmp_ne_u32 vcc, -1, v38
    s_cbranch_vccz K1_GP_DONE
    s_sub_u32 s35, s35, 1
    s_cmp_eq_u32 s35, 0
    s_cbranch_scc1 K1_GP_DONE
    s_sleep 1
    s_branch K1_GPOLL
    """)
    a.label("K1_GP_DONE")
    a(f"v_mov_b32 v36, v{EB}")
    a(f"v_mov_b32 v37, v{EB+2}")
    for cc in range(1, 15):
        a(f"s_cmp_le_u32 s30, {cc}")
        a("s_cbranch_scc1 K1_CARRY_DONE")
        cfma(a, 38, 39, 36, 37, 29, 30, EB + 4 * cc, EB + 4 * cc + 2)
        a("v_mov_b32 v36, v38")
        a("v_mov_b32 v37, v39")
    a.label("K1_CARRY_DONE")
    stamp(a, 4, 16, 0)
    cfma(a, 38, 39, 36, 37, 27, 28, 12, 13)
    cfma(a, 40, 41, 38, 39, 27, 28, 14, 15)
    cfma(a, 42, 43, 40, 41, 27, 28, 16, 17)
    a("""
    v_cmp_lt_u32 vcc, 31, v0
    s_cmp_lg_u32 s26, 0
    s_cbranch_scc1 K1_SEL_HI
    v_cndmask_b32 v44, v36, v38, vcc
    v_cndmask_b32 v45, v37, v39, vcc
    s_branch K1_SEL_DONE
    """)
    a.label("K1_SEL_HI")
    a("""
    s_nop 0
    v_cndmask_b32 v44, v40, v42, vcc
    v_cndmask_b32 v45, v41, v43, vcc
    """)
    a.label("K1_SEL_DONE")
    a("""
    v_mul_f32 v46, v25, v44
    v_fma_f32 v46, -v26, v45, v46
    v_mul_f32 v47, v25, v45
    v_fma_f32 v47, v26, v44, v47
    v_add_f32 v12, v46, v46
    v_add_f32 v13, v46, v46
    v_mul_f32 v14, -2.0, v47
    v_mul_f32 v15, -2.0, v47
    v_add_f32 v16, v47, v47
    v_add_f32 v17, v47, v47
    """)
    for j in range(16):
        t = 2 * j
        pr, pi = gr(t), pi_(t)
        a(f"v_pk_fma_f32 v[{xr(t)}:{xr(t)+1}], v[{pr}:{pr+1}], v[12:13], v[{xr(t)}:{xr(t)+1}]")
        a(f"v_pk_fma_f32 v[{gi(t)}:{gi(t)+1}], v[{pr}:{pr+1}], v[14:15], v[{gi(t)}:{gi(t)+1}]")
        a(f"v_pk_fma_f32 v[{xr(t)}:{xr(t)+1}], v[{pi}:{pi+1}], v[16:17], v[{xr(t)}:{xr(t)+1}]")
        a(f"v_pk_fma_f32 v[{gi(t)}:{gi(t)+1}], v[{pi}:{pi+1}], v[12:13], v[{gi(t)}:{gi(t)+1}]")
        a(f"v_cvt_pk_bf16_f32 v{32+j}, v{xr(t)}, v{xr(t)+1}")
        a(f"v_cvt_pk_bf16_f32 v{48+j}, v{gi(t)}, v{gi(t)+1}")
    PB = K1_PB
    a(f"""
    s_lshl_b32 s29, s27, 5
    v_add_u32 v9, s29, v7
    v_mul_u32_u24 v9, {PB}, v9
    s_lshl_b32 s29, s26, 7
    v_lshlrev_b32 v10, 6, v8
    v_add3_u32 v9, v9, v10, s29
    """)
    for i in range(4):
        a(f"ds_write_b128 v9, v[{32+4*i}:{35+4*i}] offset:{16*i}")
    for i in range(4):
        a(f"ds_write_b128 v9, v[{48+4*i}:{51+4*i}] offset:{64*PB + 16*i}")
    a(f"""
    v_lshrrev_b32 v10, 4, v0
    v_lshlrev_b32 v10, 3, v10
    v_lshrrev_b32 v11, 2, v0
    v_and_b32 v11, 3, v11
    v_add_u32 v10, v10, v11
    v_mul_u32_u24 v10, {PB}, v10
    v_and_b32 v11, 3, v0
    v_lshlrev_b32 v11, 3, v11
    s_lshl_b32 s29, s28, 6
    v_add3_u32 v10, v10, v11, s29
    v_and_b32 v11, 15, v0
    v_lshlrev_b32 v11, 12, v11
    v_lshrrev_b32 v12, 4, v0
    v_lshlrev_b32 v12, 4, v12
    v_add_u32 v11, v11, v12
    v_add_u32 v12, 0x10000, v11
    s_lshl_b32 s29, s30, 19
    s_lshl_b32 s35, s28, 17
    s_add_u32 s29, s29, s35
    s_lshl_b32 s35, s31, 7
    s_add_u32 s29, s29, s35
    s_mov_b32 s40, s16
    s_and_b32 s41, s17, 0xffff
    s_mov_b32 s42, {L*2048*2}
    s_mov_b32 s43, 0x00020000
    s_waitcnt lgkmcnt(0)
    s_barrier
    """)
    regs = []
    for j in range(2):
        for im in range(2):
            for q in range(2):
                r0 = 64 + 4 * len(regs)
                off = (64 * im + 32 * q) * PB + 32 * j
                a(f"ds_read_b64_tr_b16 v[{r0}:{r0+1}], v10 offset:{off}")
                a(f"ds_read_b64_tr_b16 v[{r0+2}:{r0+3}], v10 offset:{off + 4*PB}")
                regs.append((r0, j, im, q))
    for n_, (r0, j, im, q) in enumerate(regs):
        a(f"s_waitcnt lgkmcnt({2*(7-n_)})")
        va = 11 if j == 0 else 12
        a(f"buffer_store_dwordx4 v[{r0}:{r0+3}], v{va}, s[40:43], s29 offen offset:{im*2048 + q*64} {HSC}")
    if STAMP:
        a("s_waitcnt vmcnt(0)")
    stamp(a, 5, 16, 0)
    a.label("K1_END")
    a("s_endpgm")


K2_STAGE, K2_NB = 49152, 3
K2_LDS = K2_STAGE * K2_NB


def k2_dma_stage(a, b):
    if NODMA:
        return
    base = b * K2_STAGE
    if ROT2:
        a("s_add_u32 s32, s44, s46")
        a("s_add_u32 s33, s45, s46")
        a("s_add_u32 s36, s32, 2048")
    for j in range(4):
        dma(a, 34, base + j * 1024, 1 + j, 4, 32)
    for j in range(2):
        dma(a, 38, base + 32768 + j * 1024, 5 + j, 8, 33)
    for j in range(4):
        dma(a, 34, base + 16384 + j * 1024, 1 + j, 4, 36)
    for j in range(2):
        dma(a, 38, base + 40960 + j * 1024, 5 + j, 12, 33)
    if ROT2:
        a("s_add_u32 s46, s46, 128")
        a("s_and_b32 s46, s46, 2047")
    else:
        a("s_add_u32 s32, s32, 128")
        a("s_add_u32 s36, s36, 128")
        a("s_add_u32 s33, s33, 128")


def gen_k2(a):
    a.label("ssm_k2_kernel")
    a("""
    s_cmp_ge_u32 s2, 256
    s_cbranch_scc1 K2_END
    s_load_dwordx2 s[4:5], s[0:1], 88     ; ws (h')
    s_load_dwordx2 s[8:9], s[0:1], 40     ; C_re
    s_load_dwordx2 s[12:13], s[0:1], 48   ; C_im
    s_load_dwordx2 s[16:17], s[0:1], 0    ; x
    s_load_dwordx2 s[20:21], s[0:1], 72   ; out
    s_load_dwordx2 s[24:25], s[0:1], 64   ; Dskip
    """)
    a(WG_DECODE)
    a("""
    s_cmp_lt_u32 s28, 4
    s_cbranch_scc1 K2_MAIN
    PRIO_P
    s_sub_u32 s28, s28, 4
    v_lshrrev_b32 v7, 4, v0
    v_xor_b32 v7, v7, v0
    v_and_b32 v7, 7, v7
    v_lshlrev_b32 v7, 4, v7
    v_lshrrev_b32 v8, 3, v0
    v_lshl_add_u32 v1, v8, 12, v7
    v_xor_b32 v2, 64, v1
    v_add_u32 v2, 0x8000, v2
    v_add_u32 v3, 0x10000, v1
    v_add_u32 v4, 0x10000, v2
    v_lshl_add_u32 v5, v8, 11, v7
    v_xor_b32 v6, 64, v5
    v_add_u32 v6, 0x4000, v6
    s_lshl_b32 s32, s30, 19
    s_lshl_b32 s33, s28, 17
    s_add_u32 s32, s32, s33
    s_add_u32 s36, s32, 2048
    s_lshl_b32 s33, s31, 17
    s_lshl_b32 s34, s28, 15
    s_add_u32 s33, s33, s34
    s_lshl_b32 s34, s28, 12
    s_lshl_b32 s38, s28, 11
    s_mov_b32 s44, s32
    s_mov_b32 s45, s33
    s_lshr_b32 s46, s2, 3
    s_and_b32 s46, s46, 15
    s_lshl_b32 s46, s46, 7
    s_waitcnt lgkmcnt(0)
    """)
    srd(a, 4, L * 2048 * 2)
    srd(a, 8, D * P * 2)
    srd(a, 12, D * P * 2)
    for b in range(2):
        k2_dma_stage(a, b)
    a("s_mov_b32 s35, 4")
    a.label("K2_PLOOP")
    for b in range(3):
        a("s_waitcnt vmcnt(12)")
        a("s_barrier")
        k2_dma_stage(a, (b + 2) % 3)
    a("""
    s_sub_u32 s35, s35, 1
    s_cmp_lg_u32 s35, 0
    s_cbranch_scc1 K2_PLOOP
    """)
    for b in range(2):
        a("s_waitcnt vmcnt(12)")
        a("s_barrier")
        k2_dma_stage(a, (b + 2) % 3)
    a("""
    s_waitcnt vmcnt(12)
    s_barrier
    s_waitcnt vmcnt(0)
    s_barrier
    s_endpgm
    """)
    a.label("K2_MAIN")
    a("""
    s_and_b32 s26, s28, 1              ; wm
    s_lshr_b32 s27, s28, 1             ; kh
    v_and_b32 v14, 31, v0
    v_lshrrev_b32 v15, 5, v0
    """)
    if K2M16:
        a("""
        v_and_b32 v14, 15, v0
        v_lshrrev_b32 v15, 4, v0
        """)
    a("""
    v_lshrrev_b32 v7, 1, v14
    v_and_b32 v7, 7, v7
    v_xor_b32 v7, v15, v7
    v_lshlrev_b32 v7, 4, v7
    s_lshl_b32 s29, s27, 14
    s_lshl_b32 s32, s26, 13
    s_add_u32 s29, s29, s32
    v_lshlrev_b32 v8, 7, v14
    v_add3_u32 v144, v8, v7, s29
    s_lshl_b32 s29, s27, 13
    s_add_u32 s29, s29, 32768
    v_add3_u32 v148, v8, v7, s29
    """)
    for ks in range(1, 4):
        kx = 64 * ks if K2M16 else 32 * ks
        a(f"v_xor_b32 v{144+ks}, {kx & 127}, v144")
        a(f"v_xor_b32 v{148+ks}, {kx & 127}, v148")
    for b in range(1, 3):
        for i in range(8):
            a(f"v_add_u32 v{144+8*b+i}, {b*K2_STAGE}, v{144+i}")
    a("s_waitcnt lgkmcnt(0)")
    srd(a, 16, L * D * 2)
    srd(a, 20, L * D * 4)
    stamp(a, 0, 4, 1)
    a("""
    v_lshrrev_b32 v16, 4, v0
    v_and_b32 v17, 15, v0
    v_lshlrev_b32 v18, 11, v16
    v_lshl_add_u32 v18, v17, 3, v18
    s_lshl_b32 s29, s30, 18
    s_lshl_b32 s37, s28, 16
    s_add_u32 s29, s29, s37
    s_lshl_b32 s37, s31, 7
    s_add_u32 s29, s29, s37
    v_lshlrev_b32 v19, 3, v17
    v_add_u32 v19, s37, v19
    global_load_dwordx2 v[20:21], v19, s[24:25]
    """)
    for i in range(8):
        a(f"buffer_load_dwordx2 v[{128+2*i}:{129+2*i}], v18, s[16:19], s29 offen")
        if i < 7:
            a("s_add_u32 s29, s29, 8192")
    for r in range(64, 128):
        a(f"v_mov_b32 v{r}, 0")

    sets = [(32, 36, 40, 44), (48, 52, 56, 60)]
    ACC = [[64, 80], [96, 112]]

    def stage16(b):
        a("s_barrier")
        FS = [32, 168]

        def rd(ks, f):
            va = 144 + 8 * b + ks
            vb = 148 + 8 * b + ks
            for i in range(4):
                a(f"ds_read_b128 v[{f+4*i}:{f+4*i+3}], v{va} offset:{2048*i}")
                a(f"ds_read_b128 v[{f+16+4*i}:{f+16+4*i+3}], v{vb} offset:{2048*i}")

        def mf(f):
            for i in range(4):
                for j in range(4):
                    acc = 64 + 16 * i + 4 * j
                    a(f"v_mfma_f32_16x16x32_bf16 v[{acc}:{acc+3}], v[{f+4*i}:{f+4*i+3}], v[{f+16+4*j}:{f+16+4*j+3}], v[{acc}:{acc+3}]")
        rd(0, FS[0])
        rd(1, FS[1])
        a("s_waitcnt lgkmcnt(8)")
        mf(FS[0])
        a("s_waitcnt lgkmcnt(0)")
        mf(FS[1])

    def stage(b):
        if K2M16:
            return stage16(b)
        a("s_barrier")

        def rd(ks, s):
            if NOCOMP > 1:
                return
            A0, A1, B0, B1 = s
            va = 144 + 8 * b + ks
            vb = 148 + 8 * b + ks
            a(f"ds_read_b128 v[{A0}:{A0+3}], v{va}")
            a(f"ds_read_b128 v[{B0}:{B0+3}], v{vb}")
            a(f"ds_read_b128 v[{B1}:{B1+3}], v{vb} offset:4096")
            a(f"ds_read_b128 v[{A1}:{A1+3}], v{va} offset:4096")

        def mf(s):
            A0, A1, B0, B1 = s
            mfma(a, ACC[0][0], A0, B0)
            mfma(a, ACC[0][1], A0, B1)
            mfma(a, ACC[1][0], A1, B0)
            mfma(a, ACC[1][1], A1, B1)
        compute_stage(a, rd, mf, sets)

    stamp(a, 1, 4, 1)
    a("s_mov_b32 s35, 5")
    a.label("K2_LOOP")
    for b in range(3):
        stage(b)
    a("""
    s_sub_u32 s35, s35, 1
    s_cmp_lg_u32 s35, 0
    s_cbranch_scc1 K2_LOOP
    """)
    stage(0)
    a("s_nop 15")
    a("s_nop 3")
    stamp(a, 2, 4, 1)
    a("""
    s_barrier
    s_lshl_b32 s29, s27, 15
    s_lshl_b32 s37, s26, 14
    s_add_u32 s29, s29, s37
    v_lshlrev_b32 v1, 10, v15
    v_lshl_add_u32 v1, v14, 2, v1
    v_add_u32 v1, s29, v1
    """)
    if K2M16:
        for i in range(4):
            for j in range(4):
                for r in range(4):
                    a(f"ds_write_b32 v1, v{64+16*i+4*j+r} offset:{(16*i + r)*256 + j*64}")
    else:
      for rb in range(2):
        for nb in range(2):
            for r in range(16):
                off = (32 * rb + (r & 3) + 8 * (r >> 2)) * 256 + nb * 128
                a(f"ds_write_b32 v1, v{ACC[rb][nb]+r} offset:{off}")
    a("""
    s_lshl_b32 s29, s28, 13
    v_lshlrev_b32 v2, 8, v16
    v_lshl_add_u32 v2, v17, 4, v2
    v_add_u32 v2, s29, v2
    v_lshlrev_b32 v3, 12, v16
    v_lshl_add_u32 v3, v17, 4, v3
    s_lshl_b32 s29, s30, 19
    s_lshl_b32 s37, s28, 17
    s_add_u32 s29, s29, s37
    s_lshl_b32 s37, s31, 8
    s_add_u32 s29, s29, s37
    s_waitcnt vmcnt(0)
    v_lshlrev_b32 v22, 16, v20
    v_and_b32 v23, 0xffff0000, v20
    v_lshlrev_b32 v24, 16, v21
    v_and_b32 v25, 0xffff0000, v21
    """)
    for i in range(8):
        xr = 128 + 2 * i
        S = 32 + 4 * i
        a(f"""
        v_lshlrev_b32 v{S}, 16, v{xr}
        v_and_b32 v{S+1}, 0xffff0000, v{xr}
        v_lshlrev_b32 v{S+2}, 16, v{xr+1}
        v_and_b32 v{S+3}, 0xffff0000, v{xr+1}
        v_mul_f32 v{S}, v{S}, v22
        v_mul_f32 v{S+1}, v{S+1}, v23
        v_mul_f32 v{S+2}, v{S+2}, v24
        v_mul_f32 v{S+3}, v{S+3}, v25
        v_cvt_pk_bf16_f32 v{S}, v{S}, v{S+1}
        v_cvt_pk_bf16_f32 v{S+2}, v{S+2}, v{S+3}
        v_and_b32 v{S+1}, 0xffff0000, v{S}
        v_lshlrev_b32 v{S}, 16, v{S}
        v_and_b32 v{S+3}, 0xffff0000, v{S+2}
        v_lshlrev_b32 v{S+2}, 16, v{S+2}
        """)
    a("""
    s_waitcnt lgkmcnt(0)
    s_barrier
    """)
    for i in range(8):
        a(f"ds_read_b128 v[{64+8*i}:{67+8*i}], v2 offset:{i*1024}")
        a(f"ds_read_b128 v[{68+8*i}:{71+8*i}], v2 offset:{32768 + i*1024}")
    for i in range(8):
        A = 64 + 8 * i
        S = 32 + 4 * i
        a(f"""
        s_waitcnt lgkmcnt({14-2*i})
        v_pk_add_f32 v[{A}:{A+1}], v[{A}:{A+1}], v[{A+4}:{A+5}]
        v_pk_add_f32 v[{A+2}:{A+3}], v[{A+2}:{A+3}], v[{A+6}:{A+7}]
        v_pk_add_f32 v[{A}:{A+1}], v[{A}:{A+1}], v[{S}:{S+1}]
        v_pk_add_f32 v[{A+2}:{A+3}], v[{A+2}:{A+3}], v[{S+2}:{S+3}]
        buffer_store_dwordx4 v[{A}:{A+3}], v3, s[20:23], s29 offen {OSC}
        s_add_u32 s29, s29, 16384
        """)
    if STAMP:
        a("s_waitcnt vmcnt(0)")
    stamp(a, 3, 4, 1)
    a.label("K2_END")
    a("s_endpgm")


HEADER = """; S5 SSM (GEMM -> diagonal complex scan -> GEMM), generated by work/gen4.py (hand-designed schedule)
; @launch kernel=ssm_k1_kernel grid=(256,1,1) block=(512,1,1) lds={k1lds}
; @launch kernel=ssm_k2_kernel grid=(256,1,1) block=(512,1,1) lds={k2lds}
.amdgcn_target "amdgcn-amd-amdhsa--gfx950"
.text
"""

KD = """
.amdhsa_kernel {name}
  .amdhsa_next_free_vgpr {vgpr}
  .amdhsa_next_free_sgpr 64
  .amdhsa_accum_offset {vgpr}
  .amdhsa_group_segment_fixed_size 0
  .amdhsa_kernarg_size 96
  .amdhsa_user_sgpr_count 2
  .amdhsa_user_sgpr_kernarg_segment_ptr 1
  .amdhsa_system_sgpr_workgroup_id_x 1
  .amdhsa_float_denorm_mode_32 3
  .amdhsa_float_denorm_mode_16_64 3
.end_amdhsa_kernel
"""


def main():
    out = HEADER.format(k1lds=K1_LDS, k2lds=K2_LDS)
    a = Asm()
    a.lines.append(".globl ssm_k1_kernel\n.p2align 8\n.type ssm_k1_kernel,@function")
    gen_k1(a)
    a.lines.append(".globl ssm_k2_kernel\n.p2align 8\n.type ssm_k2_kernel,@function")
    gen_k2(a)
    out += a.text().replace("PRIO_P", f"s_setprio {PRIO}")
    out += '.section .rodata,"a"\n.p2align 6\n'
    out += KD.format(name="ssm_k1_kernel", vgpr=256)
    out += ".p2align 6\n"
    out += KD.format(name="ssm_k2_kernel", vgpr=256 if STAMP else (200 if K2M16 else 168))
    path = sys.argv[1] if len(sys.argv) > 1 else "standalone__ssm_conv_s5__prompt.s"
    open(path, "w").write(out)
    print("wrote", path, len(out))


if __name__ == "__main__":
    main()
```
